```python
import torch

def _softmax(x, axis=-1):
    return torch.softmax(x, dim=axis)

def _gelu(x):
    return torch.nn.functional.gelu(x, approximate='tanh')

def _silu(x):
    return torch.nn.functional.silu(x)

def _sigmoid(x):
    return torch.sigmoid(x)

def _layernorm(x, axis=-1, eps=1e-05):
    m = x.mean(dim=axis, keepdim=True)
    v = x.var(dim=axis, keepdim=True, unbiased=False)
    return (x - m) / torch.sqrt(v + eps)

def _scatter_add(tgt, idx, src, axis=0):
    return tgt.clone().index_add_(axis, idx, src)

def _segment_sum(src, seg, n):
    out = torch.zeros((n,) + src.shape[1:], dtype=src.dtype)
    return out.index_add_(0, seg, src)

def _pad(x, pw):
    flat = tuple((v for pair in reversed(pw) for v in pair))
    return torch.nn.functional.pad(x, flat)
kernel_name = 'adaLN_cond__compressed_kv_cla__glu_gated_bilinear__prompt'

def setup_inputs():

    _w = lambda a: (lambda t: t.to(torch.bfloat16) if t.is_floating_point() else t)(torch.as_tensor(a))

    def _A_setup():
        B, H, Sq, Sk, D, M = (1, 32, 2048, 2048, 128, 512)
        Dc = 4 * D
        return {'x': _w((lambda *s: torch.randn(*s, dtype=torch.bfloat16) * 0.05)(B, Sq, M)), 'c_kv': _w((lambda *s: torch.randn(*s, dtype=torch.bfloat16) * 0.8)(B, Sk, Dc)), 'w_q': _w((lambda *s: torch.randn(*s, dtype=torch.bfloat16) * 1.6)(M, H, D) * M ** (-0.5)), 'w_uk': _w((lambda *s: torch.randn(*s, dtype=torch.bfloat16) * 1.6)(Dc, H, D) * Dc ** (-0.5)), 'w_uv': _w((lambda *s: torch.randn(*s, dtype=torch.bfloat16) * 0.8)(Dc, H, D) * Dc ** (-0.5)), 'w_o': _w((lambda *s: torch.randn(*s, dtype=torch.bfloat16) * 0.8)(H, D, M) * (H * D) ** (-0.5))}
    _A_in = _A_setup()

    def _B_setup():
        B, S, D, F = (1, 2048, 512, 1792)
        return {'x': _w((lambda *s: torch.randn(*s, dtype=torch.bfloat16) * 0.05)(B, S, D)), 'w_gate': _w((lambda *s: torch.randn(*s, dtype=torch.bfloat16) * 0.4)(D, F) * D ** (-0.5)), 'w_up': _w((lambda *s: torch.randn(*s, dtype=torch.bfloat16) * 0.4)(D, F) * D ** (-0.5)), 'w_down': _w((lambda *s: torch.randn(*s, dtype=torch.bfloat16) * 0.4)(F, D) * F ** (-0.5))}
    _B_in = _B_setup()
    return {'A_x': _A_in['x'], 'A_c_kv': _A_in['c_kv'], 'A_w_q': _A_in['w_q'], 'A_w_uk': _A_in['w_uk'], 'A_w_uv': _A_in['w_uv'], 'A_w_o': _A_in['w_o'], 'B_x': _B_in['x'], 'B_w_gate': _B_in['w_gate'], 'B_w_up': _B_in['w_up'], 'B_w_down': _B_in['w_down'], 'c': _w((lambda *s: torch.randn(*s, dtype=torch.bfloat16) * 0.2)(1, 512) * 8.0), 'w_mod': _w((lambda *s: torch.randn(*s, dtype=torch.bfloat16) * 0.2)(512, 6 * 512) * 512 ** (-0.5) * 8.0)}

def reference(A_x, A_c_kv, A_w_q, A_w_uk, A_w_uv, A_w_o, B_x, B_w_gate, B_w_up, B_w_down, c, w_mod):

    def _A_ref(x, c_kv, w_q, w_uk, w_uv, w_o):
        B, Sq, M = (x.shape[0], x.shape[1], x.shape[2])
        Sk = c_kv.shape[1]
        H, D = (w_q.shape[1], w_q.shape[2])
        q = torch.einsum('bqm,mhd->bhqd', x, w_q)
        k = torch.einsum('bkc,chd->bhkd', c_kv, w_uk)
        v = torch.einsum('bkc,chd->bhkd', c_kv, w_uv)
        scores = torch.einsum('bhqd,bhkd->bhqk', q, k) * D ** (-0.5)
        off = Sk - Sq
        qi = torch.arange(Sq)[:, None]
        kj = torch.arange(Sk)[None, :]
        cmask = kj <= qi + off
        scores = torch.where(cmask[None, None], scores, -1000000000.0)
        p = _softmax(scores, axis=-1)
        ctx = torch.einsum('bhqk,bhkd->bhqd', p, v)
        return torch.einsum('bhqd,hdm->bqm', ctx, w_o)

    def _B_ref(x, w_gate, w_up, w_down):
        g = torch.einsum('bsd,df->bsf', x, w_gate)
        u = torch.einsum('bsd,df->bsf', x, w_up)
        h = g * u
        return torch.einsum('bsf,fd->bsd', h, w_down)
    x = A_x
    mod = (_silu(c) @ w_mod).reshape(c.shape[0], 6, 1, -1)
    sa, ca, ga, sb, cb, gb = (mod[:, 0].clone(), mod[:, 1].clone(), mod[:, 2].clone(), mod[:, 3].clone(), mod[:, 4].clone(), mod[:, 5].clone())
    h = _layernorm(x, axis=-1) * (1 + ca) + sa
    x = x + ga * _A_ref(h, A_c_kv, A_w_q, A_w_uk, A_w_uv, A_w_o)
    h = _layernorm(x, axis=-1) * (1 + cb) + sb
    x = x + gb * _B_ref(h, B_w_gate, B_w_up, B_w_down)
    return x
```

```python
from common import *
from gemm import pack
FR, Q, NEGM, P, S0, S1, O = 16, 48, 80, 96, 112, 144, 176
MF = 'v_mfma_f32_32x32x16_bf16'
AH = 6

def kv_dma(which, slot):
    base = slot * 32768 + (65536 if which == 'V' else 0)
    srd_, so, cnt = ('s[12:15]', 's46', 's48') if which == 'K' else ('s[16:19]', 's47', 's49')
    o = []
    for i in range(4):
        pre = f's_add_u32 m0, s44, {base}\ns_nop 0\n' if i == 0 else ''
        post = f'\ns_add_u32 {so}, {so}, 0x8000\ns_cmp_eq_u32 {so}, s48\ns_cselect_b32 {so}, s49, {so}' if i == 3 else ''
        o.append(pre + f'buffer_load_dwordx4 v1, {srd_}, {so} offen offset:{i*1024} lds' + post)
    return o

def max_ops(Sn):
    o = [f'v_max3_f32 v5, v{Sn}, v{Sn+1}, v{Sn+2}']
    for i in range(3, 31, 2):
        o.append(f'v_max3_f32 v5, v5, v{Sn+i}, v{Sn+i+1}')
    o.append(f'v_max_f32 v5, v5, v{Sn+31}')
    return o

def rescale(e, Sn, lab, ret):
    e.lab(lab)
    e(f'''v_mov_b32 v9, v5
    s_nop 7
    v_permlane32_swap_b32 v9, v5
    s_nop 1
    v_max3_f32 v5, v5, v9, s51
    v_max_f32 v9, 0, v5
    v_mul_f32 v9, -1.0, v9
    v_exp_f32 v9, v9
    s_mov_b32 s50, 0x41000000
    s_mov_b32 s51, 0''')
    for i in range(32):
        e(f'v_sub_f32 v{Sn+i}, v{Sn+i}, v5')
    for i in range(16):
        e(f'v_sub_f32 v{NEGM+i}, v{NEGM+i}, v5')
    for i in range(64):
        e(f'v_mul_f32 v{O+i}, v{O+i}, v9')
    e(f'v_mul_f32 v6, v6, v9\nv_mul_f32 v7, v7, v9\ns_branch {ret}')

def merge(e, par, ks, ret):
    send, keep = (O + 32, O) if ks == 0 else (O, O + 32)
    wa = ((par ^ 1) * 32768, par * 32768 + 65536)
    def ad(off):
        return ('v14', off - 65536) if off >= 65536 else ('v13', off)
    for i in range(8):
        a, off = ad(wa[ks] + i * 1024)
        e(f'ds_write_b128 {a}, {v(send+4*i,4)} offset:{off}')
    e('s_waitcnt lgkmcnt(0)\ns_barrier\nv_xor_b32 v9, 0x800, v15\nds_read_b64 v[10:11], v9')
    for i in range(8):
        a, off = ad(wa[ks ^ 1] + i * 1024)
        e(f'ds_read_b128 {v(send+4*i,4)}, {a} offset:{off}')
    e('''s_waitcnt lgkmcnt(8)
    v_min_f32 v9, v8, v10
    v_sub_f32 v8, v9, v8
    v_sub_f32 v10, v9, v10
    v_exp_f32 v8, v8
    v_exp_f32 v10, v10
    s_nop 0
    v_mul_f32 v6, v6, v8
    v_fmac_f32 v6, v11, v10
    v_rcp_f32 v6, v6
    s_nop 0
    v_mul_f32 v8, v8, v6
    v_mul_f32 v10, v10, v6''')
    for i in range(32):
        e(f'v_mul_f32 v{keep+i}, v{keep+i}, v8')
    e('s_waitcnt lgkmcnt(0)')
    for i in range(32):
        e(f'v_fmac_f32 v{keep+i}, v{send+i}, v10')
    pack(e, P, keep, 32)
    for i in range(4):
        e(f'buffer_store_dwordx4 {v(P+4*i,4)}, v1, s[20:23], s52 offen offset:{i*1024}')
    e(f's_branch {ret}')

def body(e, par):
    Sc, Sn = (S0, S1) if par == 0 else (S1, S0)
    e.lab(f'at_it{par}')
    e(f's_waitcnt vmcnt(0)\ns_barrier\ns_cmp_lg_u32 s54, s55\ns_cbranch_scc1 at_nq{par}')
    for i in range(8):
        e(f'ds_read_b128 {v(Q+4*i,4)}, v12 offset:{i*1024}')
    e(f'v_mov_b32 v8, v{NEGM}')
    for i in range(16):
        e(f'v_mov_b32 v{NEGM+i}, 0')
    e('s_waitcnt lgkmcnt(0)')
    e.lab(f'at_nq{par}')
    def rd(m):
        if m < 16:
            t, d = m & 1, m >> 1
            return f'ds_read_b128 {v(FR+4*(m%8),4)}, v2 offset:{(par^1)*32768 + (t*8+d)*1024}'
        kk, dt = (m - 16) >> 2, (m - 16) & 3
        return f'ds_read_b128 {v(FR+4*(m%8),4)}, v3 offset:{par*32768 + (dt*4+kk)*1024}'
    def mf(m):
        f = v(FR + 4 * (m % 8), 4)
        if m < 16:
            t, d = m & 1, m >> 1
            return f'{MF} {v(Sn+16*t,16)}, {f}, {v(Q+4*d,4)}, {v(NEGM,16) if d == 0 else v(Sn+16*t,16)}'
        kk, dt = (m - 16) >> 2, (m - 16) & 3
        return f'{MF} {v(O+16*dt,16)}, {f}, {v(P+4*kk,4)}, {v(O+16*dt,16)}'
    for m in range(AH):
        e(rd(m))
    dm = kv_dma('K', par) + kv_dma('V', par ^ 1)
    mx = max_ops(Sn)
    def ex(i):
        return f'v_exp_f32 v{Sc+2*i}, v{Sc+2*i}\nv_exp_f32 v{Sc+2*i+1}, v{Sc+2*i+1}'
    def fin(i):
        return f'v_cvt_pk_bf16_f32 v{P+i}, v{Sc+2*i}, v{Sc+2*i+1}\nv_pk_add_f32 v[6:7], v[6:7], {v(Sc+2*i,2)}'
    e(ex(0)); e(dm[0]); e(ex(1)); e(dm[1])
    for m in range(32):
        if m == 16:
            e(f's_cmp_eq_u32 s54, s56\ns_cbranch_scc1 at_mask{par}')
            e.lab(f'at_mret{par}')
        e(f's_waitcnt lgkmcnt({min(AH, 32 - m) - 1})')
        e(mf(m))
        if m + AH < 32:
            e(rd(m + AH))
        if m < 16:
            if m + 2 < 16:
                e(ex(m + 2))
            e(fin(m))
            if m % 2 == 0 and 2 + m // 2 < 8:
                e(dm[2 + m // 2])
        elif m >= 22:
            k = (m - 22) * 2
            for x in mx[k:k + 2]:
                e(x)
    e(f'''s_cmp_eq_u32 s54, s55
    s_cbranch_scc1 at_fin{par}''')
    e.lab(f'at_fret{par}')
    e(f'''v_cmp_lt_f32 vcc, s50, v5
    s_add_u32 s54, s54, 1
    s_cmp_lg_u64 vcc, 0
    s_cbranch_scc1 at_rs{par}''')
    if par == 1:
        e('s_branch at_it0')

def tails(e, par):
    Sn = S1 if par == 0 else S0
    rescale(e, Sn, f'at_rs{par}', f'at_it{par^1}')
    e.lab(f'at_mask{par}')
    e('s_mov_b32 s56, 15\nv_mov_b32 v9, 0xf149f2ca\ns_nop 7\ns_nop 3')
    for i in range(0, 32, 4):
        for k in range(4):
            r = i + k
            c = (r >> 4) * 32 + 8 * ((r & 15) >> 2) + (r & 3)
            e(f'v_cmp_gt_i32 s[{60+2*k}:{61+2*k}], {c}, v4')
        e('s_nop 0')
        for k in range(4):
            e(f'v_cndmask_b32 v{Sn+i+k}, v{Sn+i+k}, v9, s[{60+2*k}:{61+2*k}]')
    e(f's_branch at_mret{par}')
    e.lab(f'at_fin{par}')
    e(f'''v_add_f32 v6, v6, v7
    v_mov_b32 v7, v6
    s_nop 1
    v_permlane32_swap_b32 v7, v6
    s_nop 1
    v_add_f32 v6, v6, v7
    v_mov_b32 v9, v6
    s_barrier
    ds_write_b64 v15, v[8:9]
    s_nop 3
    s_cmp_eq_u32 s42, 0
    s_cbranch_scc0 at_mg1_{par}''')
    merge(e, par, 0, f'at_mgd{par}')
    e.lab(f'at_mg1_{par}')
    merge(e, par, 1, f'at_mgd{par}')
    e.lab(f'at_mgd{par}')
    e('s_cmp_eq_u32 s54, 16\ns_cbranch_scc1 at_done\ns_mov_b32 s55, 16\ns_mov_b32 s52, s53')
    e('s_mov_b32 s50, 0xff7fffff\ns_mov_b32 s51, 0xff7fffff\nv_mov_b32 v6, 0\nv_mov_b32 v7, 0')
    for i in range(64):
        e(f'v_mov_b32 v{O+i}, 0')
    e(f's_branch at_fret{par}')

def attn_kernel(e):
    kernel_begin(e, 'attn_kernel')
    e(f'''s_load_dwordx2 s[8:9], s[0:1], {KA['wq']}
    s_load_dwordx2 s[6:7], s[0:1], {KA['ws']}
    s_cmp_ge_u32 s2, 256
    s_cbranch_scc1 at_end
    s_and_b32 s33, s2, 7
    s_lshl_b32 s33, s33, 2
    s_bfe_u32 s34, s2, 0x20003
    s_add_u32 s33, s33, s34
    s_lshr_b32 s34, s2, 5
    v_and_b32 v1, 63, v0
    v_lshrrev_b32 v2, 6, v0
    s_sub_u32 s35, 15, s34
    v_readfirstlane_b32 s40, v2
    v_lshrrev_b32 v8, 3, v1
    v_and_b32 v9, 7, v1
    v_bfe_u32 v10, v1, 4, 1
    v_lshrrev_b32 v11, 2, v9
    v_xor_b32 v10, v10, v11
    v_and_b32 v9, 3, v9
    v_lshlrev_b32 v8, 13, v8
    v_lshl_add_u32 v8, v10, 6, v8
    v_lshl_add_u32 v8, v9, 4, v8
    s_and_b32 s41, s40, 3
    s_lshr_b32 s42, s40, 2
    v_lshrrev_b32 v4, 5, v1
    v_lshlrev_b32 v9, 9, v4
    v_bfe_u32 v5, v1, 2, 2
    v_lshl_add_u32 v9, v5, 7, v9
    v_bfe_u32 v5, v1, 4, 1
    v_lshl_add_u32 v9, v5, 5, v9
    v_and_b32 v5, 3, v1
    v_lshl_add_u32 v9, v5, 3, v9
    v_bfe_u32 v5, v1, 3, 1
    v_lshl_add_u32 v9, v5, 6, v9
    v_xor_b32 v10, 64, v9
    v_add_u32 v11, 0x10000, v9
    v_add_u32 v12, 0x10000, v10
    v_and_b32 v5, 31, v1
    v_lshlrev_b32 v4, 2, v4
    v_sub_u32 v4, v5, v4
    s_lshl_b32 s36, s41, 5
    s_lshl_b32 s37, s42, 6
    s_sub_u32 s36, s36, s37
    v_add_u32 v4, s36, v4
    v_lshlrev_b32 v15, 3, v0
    v_add_u32 v15, 0x20000, v15
    v_lshlrev_b32 v1, 4, v1
    s_lshl_b32 s36, s42, 14
    v_add_u32 v2, s36, v1
    v_add_u32 v3, 0x10000, v2
    s_lshl_b32 s36, s41, 13
    v_add_u32 v13, s36, v1
    v_add_u32 v14, 0x10000, v13
    s_waitcnt lgkmcnt(0)''')
    srd(e, 24, 8, 0, 4 * MB)
    srd(e, 28, 6, WS_H1, 2 * MB)
    srd(e, 12, 6, WS_K, 16 * MB)
    srd(e, 16, 6, WS_V, 16 * MB)
    srd(e, 20, 6, WS_CTX, 16 * MB)
    e('''s_lshl_b32 s45, s33, 8
    s_lshl_b32 s36, s42, 7
    s_add_u32 s45, s45, s36
    s_lshl_b32 s36, s41, 16
    s_add_u32 s45, s45, s36
    s_lshl_b32 s44, s42, 16
    s_lshl_b32 s36, s41, 10
    s_add_u32 s44, s44, s36
    s_cmp_eq_u32 s42, 0
    s_cselect_b32 s36, s35, s34
    s_lshl_b32 s36, s36, 2
    s_add_u32 s36, s36, s41
    s_lshl_b32 s36, s36, 15''')
    for c in range(4):
        for i in range(4):
            e(f's_add_u32 m0, s44, {(c*4+i)*4096}\ns_nop 0\nbuffer_load_dwordx4 v8, s[24:27], s45 offen lds\ns_add_u32 s45, s45, 0x40000')
        for i in range(8):
            e(f'buffer_load_dwordx4 {v(S0+(c*8+i)*4,4)}, v1, s[28:31], s36 offen offset:{(i%4)*1024}')
            if i % 4 == 3:
                e('s_add_u32 s36, s36, 4096')
    e('''s_lshl_b32 s44, s40, 12
    s_lshl_b32 s49, s33, 19
    s_add_u32 s49, s49, s44
    s_mov_b32 s46, s49
    s_mov_b32 s47, s49
    s_add_u32 s48, s35, 1
    s_lshl_b32 s48, s48, 15
    s_add_u32 s48, s48, s49
    s_lshl_b32 s36, s41, 18
    s_lshl_b32 s37, s33, 13
    s_add_u32 s36, s36, s37
    s_lshl_b32 s37, s42, 12
    s_add_u32 s36, s36, s37
    s_lshl_b32 s52, s35, 20
    s_add_u32 s52, s52, s36
    s_lshl_b32 s53, s34, 20
    s_add_u32 s53, s53, s36
    s_mov_b32 s54, 0
    s_mov_b32 s55, s35
    s_sub_u32 s56, s35, 1
    s_mov_b32 s50, 0xff7fffff
    s_mov_b32 s51, 0xff7fffff''')
    def qrd(k):
        return [f'ds_read_b64_tr_b16 {v(FR+(k&1)*16+dt*4+2*h,2)}, v{9+dt} offset:{k*2048+h*1024}' for dt in range(4) for h in range(2)]
    for k in range(32):
        if k % 8 == 0:
            e(f's_waitcnt vmcnt({12*(3-k//8)})\ns_barrier')
            for x in qrd(k): e(x)
        if k % 8 != 7:
            for x in qrd(k + 1): e(x)
            e('s_waitcnt lgkmcnt(8)')
        else:
            e('s_waitcnt lgkmcnt(0)')
        for dt in range(4):
            c = v(Q + 16 * dt, 16)
            e(f'{MF} {c}, {v(FR+(k&1)*16+dt*4,4)}, {v(S0+4*k,4)}, {"0" if k == 0 else c}')
    e('s_barrier')
    for x in kv_dma('K', 0) + kv_dma('K', 1) + kv_dma('V', 0): e(x)
    e('s_lshl_b32 s36, s42, 15\ns_add_u32 s36, s36, 0x18000\nv_add_u32 v9, s36, v13\nv_add_u32 v12, 0x20000, v13')
    for i in range(64):
        e(f'v_mul_f32 v{Q+i}, 0x3e0293ee, v{Q+i}')
    pack(e, S1, Q, 64)
    for i in range(8):
        e(f'ds_write_b128 v9, {v(S1+4*i,4)} offset:{i*1024}')
    e('s_waitcnt vmcnt(8) lgkmcnt(0)\ns_barrier')
    for i in range(8):
        e(f'ds_read_b128 {v(Q+4*i,4)}, v14 offset:{32768+i*1024}')
    for i in range(64):
        e(f'v_mov_b32 v{O+i}, 0')
    for i in range(16):
        e(f'v_mov_b32 v{NEGM+i}, 0')
    e('v_mov_b32 v6, 0\nv_mov_b32 v7, 0\ns_waitcnt lgkmcnt(0)')
    for h in range(2):
        for m in range(8):
            e(f'ds_read_b128 {v(FR+4*m,4)}, v2 offset:{((m&1)*8+h*4+(m>>1))*1024}')
        for m in range(8):
            t, d = m & 1, h * 4 + (m >> 1)
            e(f's_waitcnt lgkmcnt({7-m})\n{MF} {v(S0+16*t,16)}, {v(FR+4*m,4)}, {v(Q+4*d,4)}, {"0" if d == 0 else v(S0+16*t,16)}')
    e('s_nop 7\ns_nop 7')
    for x in max_ops(S0): e(x)
    e('s_branch at_rs1')
    body(e, 0)
    body(e, 1)
    tails(e, 0)
    tails(e, 1)
    e.lab('at_done')
    e('s_waitcnt vmcnt(0)')
    e.lab('at_end')
    e('s_endpgm')
    return kernel_desc('attn_kernel', 240), 160 * 1024
```

```python
MB = 1 << 20
WS_MOD = 0
WS_CKV = 1 * MB
WS_H1 = 3 * MB
WS_H2 = 5 * MB
WS_X1 = 7 * MB
WS_HH = 9 * MB
WS_K = 16 * MB
WS_V = 32 * MB
WS_CTX = 48 * MB
WS_PART = 64 * MB
KA = dict(x=0, ckv=8, wq=16, wuk=24, wuv=32, wo=40, bx=48, wg=56, wu=64, wd=72, c=80, wmod=88, out=96, dbg=104, ws=112)

class E:
    def __init__(self):
        self.l = []
        self.n = 0
    def __call__(self, s):
        for x in s.strip().split('\n'):
            self.l.append('    ' + x.strip())
    def lab(self, s):
        self.l.append(s + ':')
    def uniq(self, p):
        self.n += 1
        return f'{p}_{self.n}'
    def text(self):
        return '\n'.join(self.l) + '\n'

def v(a, n=1):
    return f'v{a}' if n == 1 else f'v[{a}:{a+n-1}]'
def s(a, n=1):
    return f's{a}' if n == 1 else f's[{a}:{a+n-1}]'

def srd(e, d, base, off, size):
    if off:
        e(f's_add_u32 s{d}, s{base}, {off}\ns_addc_u32 s{d+1}, s{base+1}, 0')
    else:
        e(f's_mov_b32 s{d}, s{base}\ns_mov_b32 s{d+1}, s{base+1}')
    e(f's_mov_b32 s{d+2}, {size}\ns_mov_b32 s{d+3}, 0x00020000')

def kernel_begin(e, name):
    e.l.append(f'.text\n.globl {name}\n.p2align 8\n.type {name},@function\n{name}:')

def kernel_desc(name, nv, ns=102):
    acc = (nv + 3) // 4 * 4
    return f'''.section .rodata,"a"
.p2align 6
.amdhsa_kernel {name}
  .amdhsa_next_free_vgpr {nv}
  .amdhsa_next_free_sgpr {ns}
  .amdhsa_accum_offset {acc}
  .amdhsa_group_segment_fixed_size 0
  .amdhsa_kernarg_size 120
  .amdhsa_user_sgpr_count 2
  .amdhsa_user_sgpr_kernarg_segment_ptr 1
  .amdhsa_system_sgpr_workgroup_id_x 1
.end_amdhsa_kernel
'''

def unpack(e, lo, hi, src):
    e(f'v_and_b32 v{hi}, 0xffff0000, v{src}\nv_lshlrev_b32 v{lo}, 16, v{src}')

def xor_reduce_row8(e, val, tmp):
    e(f'ds_swizzle_b32 v{tmp}, v{val} offset:0x201F\ns_waitcnt lgkmcnt(0)\nv_add_f32 v{val}, v{val}, v{tmp}')
    e(f'ds_swizzle_b32 v{tmp}, v{val} offset:0x401F\ns_waitcnt lgkmcnt(0)\nv_add_f32 v{val}, v{val}, v{tmp}')
    e(f'v_mov_b32 v{tmp}, v{val}\ns_nop 1\nv_permlane32_swap_b32 v{tmp}, v{val}\ns_nop 1\nv_add_f32 v{val}, v{val}, v{tmp}')

def layernorm_rows(e, xs, nw, lds_off, vt, vtid, sc, sh):
    a, b, c, d = vt, vt + 1, vt + 2, vt + 3
    def allsum(off):
        xor_reduce_row8(e, a, b)
        e(f'v_lshrrev_b32 v{b}, 6, v{vtid}\nv_lshlrev_b32 v{b}, 5, v{b}\nv_and_b32 v{c}, 7, v{vtid}\nv_lshlrev_b32 v{c}, 2, v{c}')
        e(f'v_add_u32 v{b}, v{b}, v{c}\nds_write_b32 v{b}, v{a} offset:{off}\ns_waitcnt lgkmcnt(0)\ns_barrier')
        e(f'ds_read_b32 v{a}, v{c} offset:{off}')
        for w in range(1, nw):
            e(f'ds_read_b32 v{b}, v{c} offset:{off + 32 * w}\ns_waitcnt lgkmcnt(0)\nv_add_f32 v{a}, v{a}, v{b}')
    e(f'v_add_f32 v{a}, v{xs[0]}, v{xs[1]}')
    for x in xs[2:]:
        e(f'v_add_f32 v{a}, v{a}, v{x}')
    allsum(lds_off)
    e(f'v_mul_f32 v{d}, 0x3b000000, v{a}')
    for x in xs:
        e(f'v_sub_f32 v{x}, v{x}, v{d}')
    e(f'v_mul_f32 v{a}, v{xs[0]}, v{xs[0]}')
    for x in xs[1:]:
        e(f'v_fmac_f32 v{a}, v{x}, v{x}')
    allsum(lds_off + 32 * nw)
    e(f'v_mov_b32 v{b}, 0x3727c5ac\nv_fmac_f32 v{b}, 0x3b000000, v{a}\nv_rsq_f32 v{b}, v{b}\ns_nop 0')
    for x, p, q in zip(xs, sc, sh):
        e(f'v_mul_f32 v{x}, v{x}, v{b}\nv_fma_f32 v{x}, v{x}, v{p}, v{q}')
```

```python
from common import *

def interleave(main, extra):
    out = []
    n, m = len(main), len(extra)
    for i, x in enumerate(main):
        out.append(x)
        out += [extra[k] for k in range(m) if k * n // m == i]
    return out

class G:
    def __init__(s, NW, WC, TR, RT, KS, NP, NS, nst, ld, wtiles, base=0):
        s.__dict__.update(locals())
        s.BK = KS * 16
        s.ACT = RT * KS * 1024
        s.PAN = s.BK * 128
        s.STG = s.ACT + NP * s.PAN
        s.na = RT * KS // NW
        s.nwd = NP * (s.BK // 8) // NW
        s.L = s.na + s.nwd
        s.TC = len(wtiles)
        s.lds = base + NS * s.STG
        s.F = 12
        s.FS = (TR + s.TC) * 4
        s.ACC = s.F + 2 * s.FS
        s.NV = s.ACC + TR * s.TC * 16
    def acc(s, tr, tc):
        return s.ACC + (tr * s.TC + tc) * 16
    def setup(s, e, wpan):
        lg = {1: 0, 2: 1, 4: 2, 8: 3}
        e(f'''v_and_b32 v1, 63, v0
        v_lshrrev_b32 v2, 6, v0
        s_nop 0
        v_readfirstlane_b32 s40, v2
        v_lshrrev_b32 v8, 3, v1
        v_and_b32 v9, 7, v1
        v_bfe_u32 v10, v1, 4, 1
        v_lshrrev_b32 v11, 2, v9
        v_xor_b32 v10, v10, v11
        v_and_b32 v9, 3, v9
        v_mul_u32_u24 v8, {s.ld}, v8
        v_lshl_add_u32 v8, v10, 6, v8
        v_lshl_add_u32 v8, v9, 4, v8
        s_lshr_b32 s41, s40, {lg[s.WC]}
        s_and_b32 s42, s40, {s.WC - 1}
        v_lshrrev_b32 v4, 5, v1
        v_lshlrev_b32 v4, 9, v4
        v_bfe_u32 v5, v1, 2, 2
        v_lshl_add_u32 v4, v5, 7, v4
        v_bfe_u32 v5, v1, 4, 1
        v_lshl_add_u32 v4, v5, 5, v4
        v_and_b32 v5, 3, v1
        v_lshl_add_u32 v4, v5, 3, v4
        v_bfe_u32 v5, v1, 3, 1
        v_lshl_add_u32 v4, v5, 6, v4
        v_lshlrev_b32 v1, 4, v1
        s_mul_i32 s43, s41, {s.TR * s.KS * 1024}
        v_add_u32 v2, s43, v1
        v_add_u32 v3, 0x10000, v2''')
        if wpan:
            e(wpan + '\nv_add_u32 v4, s43, v4')
        e('v_xor_b32 v6, 64, v4\nv_add_u32 v5, 0x10000, v4\nv_add_u32 v7, 0x10000, v6')
        for i in range(1, s.nwd):
            e(f'v_add_u32 v{8+i}, {i * (8 * s.ld - 1024)}, v8')
        e(f's_mul_i32 s44, s40, {s.na * 1024}\ns_mul_i32 s45, s40, {s.nwd * 1024}\ns_add_u32 s45, s45, {s.ACT}')
    def dma(s, st):
        b = s.base + (st % s.NS) * s.STG
        o = []
        for i in range(s.na):
            pre = f's_add_u32 m0, s44, {b}\ns_nop 0\n' if i == 0 else ''
            post = f'\ns_add_u32 s46, s46, {s.KS * 1024}' if i == s.na - 1 else ''
            o.append(pre + f'buffer_load_dwordx4 v1, s[12:15], s46 offen offset:{i*1024} lds' + post)
        for i in range(s.nwd):
            pre = f's_add_u32 m0, s45, {b}\ns_nop 0\n' if i == 0 else ''
            post = f'\ns_add_u32 s47, s47, {s.BK * s.ld}' if i == s.nwd - 1 else ''
            o.append(pre + f'buffer_load_dwordx4 v{8+i}, s[16:19], s47 offen offset:{i*1024} lds' + post)
        return o
    def rd(s, op, d, n, a, off):
        if off >= 65536:
            a += 1; off -= 65536
        return f'{op} {v(d, n)}, v{a} offset:{off}'
    def reads(s, st, ks, fs):
        b = s.base + (st % s.NS) * s.STG
        f = s.F + fs * s.FS
        o = []
        for tc, (j, po) in enumerate(s.wtiles):
            for h in range(2):
                o.append(s.rd('ds_read_b64_tr_b16', f + (s.TR + tc) * 4 + 2 * h, 2, 4 + 2 * j, b + s.ACT + po + ks * 2048 + h * 1024))
            if tc == 0:
                o.append(s.rd('ds_read_b128', f, 4, 2, b + ks * 1024))
        for tr in range(1, s.TR):
            o.append(s.rd('ds_read_b128', f + tr * 4, 4, 2, b + (tr * s.KS + ks) * 1024))
        return o
    def mfmas(s, fs, mode, first=False):
        f = s.F + fs * s.FS
        o = []
        for tr in range(s.TR):
            for tc in range(s.TC):
                a, w = v(f + tr * 4, 4), v(f + (s.TR + tc) * 4, 4)
                if mode == 'AW':
                    a, w = w, a
                c = v(s.acc(tr, tc), 16)
                o.append(f'v_mfma_f32_32x32x16_bf16 {c}, {w}, {a}, {"0" if first else c}')
        return o
    def prologue(s, e):
        for st in range(s.NS):
            for x in s.dma(st):
                e(x)
    def loop(s, e, mode):
        R = len(s.reads(0, 0, 0))
        e(f's_waitcnt vmcnt({(s.NS - 1) * s.L})\ns_barrier')
        for x in s.reads(0, 0, 0): e(x)
        fs = 0
        for st in range(s.nst):
            for ks in range(s.KS - 1):
                for x in s.reads(st, ks + 1, fs ^ 1): e(x)
                e(f's_waitcnt lgkmcnt({R})')
                for x in s.mfmas(fs, mode, st == 0 and ks == 0): e(x)
                fs ^= 1
            if st + 1 < s.nst:
                pend = min(s.NS - 2, s.nst - st - 2)
                e(f's_waitcnt vmcnt({pend * s.L}) lgkmcnt(0)\ns_barrier')
                for x in s.reads(st + 1, 0, fs ^ 1): e(x)
            else:
                e('s_waitcnt lgkmcnt(0)')
            d = s.dma(st + s.NS) if st + s.NS < s.nst else []
            for x in interleave(s.mfmas(fs, mode), d): e(x)
            fs ^= 1
        e('s_nop 7\ns_nop 7')

def pack(e, d, a, n=16):
    for i in range(n // 2):
        e(f'v_cvt_pk_bf16_f32 v{d+i}, v{a+2*i}, v{a+2*i+1}')

def kv_kernel(e):
    g = G(8, 4, 4, 8, 2, 4, 4, 16, 8192, [(0, 0), (1, 0)], base=1024)
    kernel_begin(e, 'kv_kernel')
    e(f'''s_load_dwordx2 s[4:5], s[0:1], {KA['x']}
    s_load_dwordx4 s[8:11], s[0:1], {KA['wuk']}
    s_load_dwordx2 s[6:7], s[0:1], {KA['ws']}
    s_cmp_ge_u32 s2, 256
    s_cbranch_scc1 kv_end
    s_and_b32 s33, s2, 7
    s_lshl_b32 s33, s33, 2
    s_bfe_u32 s34, s2, 0x20003
    s_add_u32 s33, s33, s34
    s_lshr_b32 s34, s2, 5''')
    g.setup(e, f's_mul_i32 s43, s42, {g.PAN}')
    e('''s_waitcnt lgkmcnt(0)
    s_cmp_ge_u32 s33, 16
    s_cselect_b32 s8, s10, s8
    s_cselect_b32 s9, s11, s9
    s_and_b32 s35, s33, 15''')
    srd(e, 12, 6, WS_CKV, 2 * MB)
    srd(e, 16, 8, 0, 4 * MB)
    srd(e, 20, 4, 0, 2 * MB)
    srd(e, 24, 6, WS_MOD, 3072 * 4)
    srd(e, 28, 6, WS_H1, 2 * MB)
    A = g.ACC
    e(f'''v_and_b32 v{A}, 7, v0
    v_bfe_u32 v{A+1}, v0, 3, 1
    v_lshrrev_b32 v{A+2}, 4, v0
    v_lshlrev_b32 v{A+3}, 10, v{A}
    v_lshl_add_u32 v{A+3}, v{A+1}, 3, v{A+3}
    v_lshl_add_u32 v{A+3}, v{A+2}, 5, v{A+3}
    s_lshl_b32 s36, s2, 13
    buffer_load_dwordx2 v[{A+8}:{A+9}], v{A+3}, s[20:23], s36 offen
    buffer_load_dwordx2 v[{A+10}:{A+11}], v{A+3}, s[20:23], s36 offen offset:16
    v_lshlrev_b32 v{A+3}, 4, v{A+1}
    v_lshl_add_u32 v{A+3}, v{A+2}, 6, v{A+3}
    buffer_load_dwordx4 v[{A+16}:{A+19}], v{A+3}, s[24:27], 0 offen
    buffer_load_dwordx4 v[{A+20}:{A+23}], v{A+3}, s[24:27], 0 offen offset:32
    buffer_load_dwordx4 v[{A+24}:{A+27}], v{A+3}, s[24:27], 0 offen offset:2048
    buffer_load_dwordx4 v[{A+28}:{A+31}], v{A+3}, s[24:27], 0 offen offset:2080
    v_lshlrev_b32 v{A+3}, 4, v{A}
    v_lshl_add_u32 v{A+3}, v{A+1}, 9, v{A+3}
    v_lshl_add_u32 v{A+3}, v{A+2}, 10, v{A+3}
    s_lshl_b32 s46, s34, 3
    s_add_u32 s46, s46, s40
    s_lshl_b32 s46, s46, 15
    s_lshr_b32 s47, s40, 1
    s_lshl_b32 s47, s47, 7
    s_and_b32 s36, s40, 1
    s_lshl_b32 s36, s36, 17
    s_add_u32 s47, s47, s36
    s_lshl_b32 s36, s35, 9
    s_add_u32 s47, s47, s36''')
    g.prologue(e)
    e(f's_waitcnt vmcnt({g.NS * g.L})')
    for i in range(4):
        unpack(e, A + 32 + 2 * i, A + 33 + 2 * i, A + 8 + i)
    layernorm_rows(e, [A + 32 + i for i in range(8)], 8, 0, A + 4, 0, [A + 24 + i for i in range(8)], [A + 16 + i for i in range(8)])
    pack(e, A + 8, A + 32, 8)
    e(f'''s_lshr_b32 s36, s2, 2
    s_lshl_b32 s36, s36, 15
    s_and_b32 s37, s2, 3
    s_lshl_b32 s37, s37, 7
    s_add_u32 s36, s36, s37
    buffer_store_dwordx4 v[{A+8}:{A+11}], v{A+3}, s[28:31], s36 offen
    s_lshl_b32 s36, s35, 1
    s_lshr_b32 s37, s42, 1
    s_add_u32 s36, s36, s37
    s_lshl_b32 s36, s36, 19
    s_lshl_b32 s37, s34, 16
    s_add_u32 s36, s36, s37
    s_lshl_b32 s37, s41, 15
    s_add_u32 s36, s36, s37
    s_and_b32 s37, s42, 1
    s_cmp_ge_u32 s33, 16
    s_cbranch_scc1 kv_v
    s_lshl_b32 s37, s37, 12
    s_add_u32 s36, s36, s37''')
    srd(e, 20, 6, WS_K, 16 * MB)
    g.loop(e, 'WA')
    for tr in range(4):
        for tc in range(2):
            d = g.F + ((tr * 2 + tc) % 4) * 8
            pack(e, d, g.acc(tr, tc))
            e(f'buffer_store_dwordx4 {v(d,4)}, v1, s[20:23], s36 offen offset:{tc*2048}\nbuffer_store_dwordx4 {v(d+4,4)}, v1, s[20:23], s36 offen offset:{tc*2048+1024}')
        e('s_add_u32 s36, s36, 8192')
    e('s_endpgm')
    e.lab('kv_v')
    e('s_lshl_b32 s37, s37, 13\ns_add_u32 s36, s36, s37')
    srd(e, 20, 6, WS_V, 16 * MB)
    g.loop(e, 'AW')
    i = 0
    for t2 in range(2):
        for tc in range(2):
            for t1 in range(2):
                d = g.F + (i % 4) * 8; i += 1
                pack(e, d, g.acc(t2 * 2 + t1, tc))
                e(f'buffer_store_dwordx4 {v(d,4)}, v1, s[20:23], s36 offen offset:{t1*2048}\nbuffer_store_dwordx4 {v(d+4,4)}, v1, s[20:23], s36 offen offset:{t1*2048+1024}')
            e(f's_add_u32 s36, s36, {4096 if tc == 0 else 16384 - 4096}')
    e.lab('kv_end')
    e('s_endpgm')
    return kernel_desc('kv_kernel', g.NV), g.lds

def op_kernel(e):
    g = G(4, 2, 2, 4, 4, 2, 4, 16, 1024, [(0, 0), (1, 0)])
    kernel_begin(e, 'op_kernel')
    e(f'''s_load_dwordx2 s[8:9], s[0:1], {KA['wo']}
    s_load_dwordx2 s[6:7], s[0:1], {KA['ws']}
    s_cmp_ge_u32 s2, 256
    s_cbranch_scc1 op_end
    s_bfe_u32 s33, s2, 0x20001
    s_and_b32 s34, s2, 1
    s_lshl_b32 s34, s34, 3
    s_lshr_b32 s35, s2, 5
    s_add_u32 s34, s34, s35
    s_bfe_u32 s35, s2, 0x20003''')
    g.setup(e, f's_mul_i32 s43, s42, {g.PAN}')
    e('s_waitcnt lgkmcnt(0)')
    srd(e, 12, 6, WS_CTX, 16 * MB)
    srd(e, 16, 8, 0, 4 * MB)
    srd(e, 20, 6, WS_PART, 16 * MB)
    e('''s_lshl_b32 s46, s34, 2
    s_add_u32 s46, s46, s40
    s_lshl_b32 s46, s46, 18
    s_lshl_b32 s36, s33, 16
    s_add_u32 s46, s46, s36
    s_lshr_b32 s47, s40, 1
    s_lshl_b32 s47, s47, 7
    s_and_b32 s36, s40, 1
    s_lshl_b32 s36, s36, 15
    s_add_u32 s47, s47, s36
    s_lshl_b32 s36, s35, 8
    s_add_u32 s47, s47, s36
    s_lshl_b32 s36, s33, 20
    s_add_u32 s47, s47, s36''')
    g.prologue(e)
    e('''s_lshl_b32 s36, s33, 22
    s_lshl_b32 s37, s34, 18
    s_add_u32 s36, s36, s37
    s_lshl_b32 s37, s41, 17
    s_add_u32 s36, s36, s37
    s_lshl_b32 s37, s35, 14
    s_add_u32 s36, s36, s37
    s_lshl_b32 s37, s42, 13
    s_add_u32 s36, s36, s37''')
    g.loop(e, 'WA')
    for tr in range(2):
        for tc in range(2):
            for q in range(4):
                e(f'buffer_store_dwordx4 {v(g.acc(tr,tc)+4*q,4)}, v1, s[20:23], s36 offen offset:{q*1024}')
            e(f's_add_u32 s36, s36, {4096 if tc == 0 else 65536 - 4096}')
    e.lab('op_end')
    e('s_endpgm')
    return kernel_desc('op_kernel', g.NV), g.lds

def gu_kernel(e):
    g = G(8, 2, 2, 8, 2, 2, 5, 16, 3584, [(0, 0), (0, 4096)])
    kernel_begin(e, 'gu_kernel')
    e(f'''s_load_dwordx4 s[8:11], s[0:1], {KA['wg']}
    s_load_dwordx2 s[6:7], s[0:1], {KA['ws']}
    s_cmp_ge_u32 s2, 224
    s_cbranch_scc1 gu_end
    s_and_b32 s34, s2, 7
    s_lshr_b32 s35, s2, 3''')
    g.setup(e, None)
    e('''s_lshl_b32 s43, s42, 6
    v_xor_b32 v4, s43, v4
    v_xor_b32 v5, s43, v5
    s_waitcnt lgkmcnt(0)
    s_cmp_ge_u32 s40, 4
    s_cselect_b32 s8, s10, s8
    s_cselect_b32 s9, s11, s9''')
    srd(e, 12, 6, WS_H2, 2 * MB)
    srd(e, 16, 8, 0, 512 * 3584)
    srd(e, 20, 6, WS_HH, 7 * MB)
    e(f'''s_lshl_b32 s46, s34, 3
    s_add_u32 s46, s46, s40
    s_lshl_b32 s46, s46, 15
    s_and_b32 s47, s40, 3
    s_mul_i32 s47, s47, {8*3584}
    s_lshl_b32 s36, s35, 7
    s_add_u32 s47, s47, s36''')
    g.prologue(e)
    e(f'''s_lshl_b32 s36, s34, 3
    s_lshl_b32 s37, s41, 1
    s_add_u32 s36, s36, s37
    s_mul_i32 s36, s36, {112*1024}
    s_lshl_b32 s37, s35, 12
    s_add_u32 s36, s36, s37
    s_lshl_b32 s37, s42, 11
    s_add_u32 s36, s36, s37''')
    g.loop(e, 'WA')
    for tr in range(2):
        a, b = g.acc(tr, 0), g.acc(tr, 1)
        for i in range(16):
            e(f'v_mul_f32 v{a+i}, v{a+i}, v{b+i}')
        d = g.F + tr * 8
        pack(e, d, a)
        e(f'buffer_store_dwordx4 {v(d,4)}, v1, s[20:23], s36 offen\nbuffer_store_dwordx4 {v(d+4,4)}, v1, s[20:23], s36 offen offset:1024\ns_add_u32 s36, s36, {112*1024}')
    e.lab('gu_end')
    e('s_endpgm')
    return kernel_desc('gu_kernel', g.NV), g.lds

def dn_kernel(e):
    g = G(4, 2, 1, 2, 4, 1, 7, 28, 1024, [(0, 0)])
    kernel_begin(e, 'dn_kernel')
    e(f'''s_load_dwordx2 s[8:9], s[0:1], {KA['wd']}
    s_load_dwordx2 s[6:7], s[0:1], {KA['ws']}
    s_load_dwordx2 s[4:5], s[0:1], {KA['out']}
    s_cmp_ge_u32 s2, 256
    s_cbranch_scc1 dn_end
    s_and_b32 s34, s2, 7
    s_lshl_b32 s34, s34, 2
    s_bfe_u32 s35, s2, 0x20003
    s_add_u32 s34, s34, s35
    s_lshr_b32 s35, s2, 5''')
    g.setup(e, None)
    e('''s_lshl_b32 s43, s42, 6
    v_xor_b32 v4, s43, v4
    v_xor_b32 v5, s43, v5
    s_waitcnt lgkmcnt(0)''')
    srd(e, 12, 6, WS_HH, 7 * MB)
    srd(e, 16, 8, 0, 1792 * 1024)
    srd(e, 20, 4, 0, 2 * MB)
    srd(e, 24, 6, WS_X1, 2 * MB)
    srd(e, 28, 6, WS_MOD, 3072 * 4)
    X = g.NV
    e(f'''s_lshl_b32 s36, s34, 1
    s_add_u32 s36, s36, s41
    s_lshl_b32 s37, s35, 1
    s_add_u32 s37, s37, s42
    s_lshl_b32 s38, s36, 15
    s_lshl_b32 s39, s37, 11
    s_add_u32 s39, s38, s39
    buffer_load_dwordx4 v[{X}:{X+3}], v1, s[24:27], s39 offen
    buffer_load_dwordx4 v[{X+4}:{X+7}], v1, s[24:27], s39 offen offset:1024
    v_lshrrev_b32 v10, 9, v1
    v_lshlrev_b32 v10, 4, v10
    s_lshl_b32 s39, s37, 7
    s_add_u32 s39, s39, {5*2048}''')
    for q in range(4):
        e(f'buffer_load_dwordx4 {v(X+8+4*q,4)}, v10, s[28:31], s39 offen offset:{32*q}')
    e(f'''v_and_b32 v11, 0x1f0, v1
    v_lshl_add_u32 v10, v11, 6, v10
    s_lshl_b32 s37, s37, 6
    s_add_u32 s38, s38, s37
    s_mul_i32 s46, s36, {112*1024}
    s_lshl_b32 s37, s42, 11
    s_add_u32 s46, s46, s37
    s_lshl_b32 s47, s40, 14
    s_lshl_b32 s37, s35, 7
    s_add_u32 s47, s47, s37''')
    g.prologue(e)
    g.loop(e, 'WA')
    a = g.acc(0, 0)
    F = g.F
    for i in range(8):
        unpack(e, F + 2 * i, F + 2 * i + 1, X + i)
    for i in range(16):
        e(f'v_fmac_f32 v{F+i}, v{a+i}, v{X+8+i}')
    pack(e, X, F)
    e('s_nop 1')
    for t in range(2):
        e(f'v_permlane32_swap_b32 v{X+4*t}, v{X+4*t+2}\nv_permlane32_swap_b32 v{X+4*t+1}, v{X+4*t+3}')
    e(f's_nop 1\nbuffer_store_dwordx4 {v(X,4)}, v10, s[20:23], s38 offen\nbuffer_store_dwordx4 {v(X+4,4)}, v10, s[20:23], s38 offen offset:32')
    e.lab('dn_end')
    e('s_endpgm')
    return kernel_desc('dn_kernel', X + 24), g.lds
```

```python
from common import *

def prep_kernel(e):
    kernel_begin(e, 'prep_kernel')
    e(f'''s_load_dwordx2 s[4:5], s[0:1], {KA['ckv']}
    s_load_dwordx4 s[8:11], s[0:1], {KA['c']}
    s_load_dwordx2 s[6:7], s[0:1], {KA['ws']}
    s_cmp_ge_u32 s2, 304
    s_cbranch_scc1 prep_end
    s_waitcnt lgkmcnt(0)
    s_cmp_ge_u32 s2, 48
    s_cbranch_scc1 prep_relayout''')
    srd(e, 12, 8, 0, 1024)
    srd(e, 16, 10, 0, 512 * 3072 * 2)
    srd(e, 20, 6, WS_MOD, 3072 * 4)
    e('''v_lshrrev_b32 v1, 3, v0
    v_lshlrev_b32 v2, 5, v1
    buffer_load_dwordx4 v[4:7], v2, s[12:15], 0 offen
    buffer_load_dwordx4 v[8:11], v2, s[12:15], 0 offen offset:16
    s_mov_b32 s24, 98304
    v_mul_lo_u32 v2, v1, s24
    v_and_b32 v3, 7, v0
    v_lshl_add_u32 v2, v3, 4, v2
    s_lshl_b32 s24, s2, 7''')
    for i in range(16):
        e(f'buffer_load_dwordx4 v[{32+4*i}:{35+4*i}], v2, s[16:19], s24 offen\ns_add_u32 s24, s24, 6144')
    e('s_waitcnt vmcnt(16)')
    for i in range(8):
        unpack(e, 12 + 2 * i, 13 + 2 * i, 4 + i)
    for i in range(16):
        x = 12 + i
        e(f'''v_mul_f32 v28, 0xbfb8aa3b, v{x}
        v_exp_f32 v28, v28
        s_nop 0
        v_add_f32 v28, 1.0, v28
        v_rcp_f32 v28, v28
        s_nop 0
        v_mul_f32 v{x}, v{x}, v28
        v_cvt_pk_bf16_f32 v{x}, v{x}, v{x}
        v_lshlrev_b32 v{x}, 16, v{x}''')
    for j in range(8):
        e(f'v_mov_b32 v{4+j}, 0')
    for i in range(16):
        e(f's_waitcnt vmcnt({15-i})')
        for j in range(4):
            unpack(e, 28, 29, 32 + 4 * i + j)
            e(f'v_fmac_f32 v{4+2*j}, v28, v{12+i}\nv_fmac_f32 v{5+2*j}, v29, v{12+i}')
    e('''v_lshlrev_b32 v2, 5, v0
    ds_write_b128 v2, v[4:7]
    ds_write_b128 v2, v[8:11] offset:16
    s_waitcnt lgkmcnt(0)
    s_barrier
    v_cmp_gt_u32 vcc, 64, v0
    s_and_saveexec_b64 s[26:27], vcc
    s_cbranch_execz prep_end
    v_lshlrev_b32 v2, 2, v0''')
    for i in range(32):
        e(f'ds_read_b32 v{32+i}, v2 offset:{256*i}')
        if i % 8 == 7:
            e('s_waitcnt lgkmcnt(0)')
    for i in range(1, 32):
        e(f'v_add_f32 v32, v32, v{32+i}')
    e('''v_cvt_pk_bf16_f32 v32, v32, v32
    v_lshlrev_b32 v32, 16, v32
    s_lshr_b32 s24, s2, 3
    s_cmp_eq_u32 s24, 1
    s_cselect_b32 s25, 1.0, 0
    s_cmp_eq_u32 s24, 4
    s_cselect_b32 s25, 1.0, s25
    v_add_f32 v32, s25, v32
    v_cvt_pk_bf16_f32 v32, v32, v32
    v_lshlrev_b32 v32, 16, v32
    s_lshl_b32 s24, s2, 8
    buffer_store_dword v32, v2, s[20:23], s24 offen
    s_endpgm''')
    e.lab('prep_relayout')
    srd(e, 12, 4, 0, 2 * MB)
    srd(e, 16, 6, WS_CKV, 2 * MB)
    e('''s_sub_u32 s2, s2, 48
    v_and_b32 v1, 7, v0
    v_bfe_u32 v2, v0, 3, 1
    v_lshrrev_b32 v3, 4, v0
    v_lshlrev_b32 v4, 10, v1
    v_lshl_add_u32 v4, v2, 3, v4
    v_lshl_add_u32 v4, v3, 5, v4
    s_lshl_b32 s24, s2, 13
    buffer_load_dwordx2 v[8:9], v4, s[12:15], s24 offen
    buffer_load_dwordx2 v[10:11], v4, s[12:15], s24 offen offset:16
    buffer_load_dwordx2 v[12:13], v4, s[12:15], s24 offen offset:512
    buffer_load_dwordx2 v[14:15], v4, s[12:15], s24 offen offset:528
    v_lshlrev_b32 v5, 4, v1
    v_lshl_add_u32 v5, v2, 9, v5
    v_lshl_add_u32 v5, v3, 10, v5
    v_add_u32 v6, 0x4000, v5
    s_lshr_b32 s25, s2, 2
    s_lshl_b32 s25, s25, 15
    s_and_b32 s26, s2, 3
    s_lshl_b32 s26, s26, 7
    s_add_u32 s25, s25, s26
    s_waitcnt vmcnt(2)
    buffer_store_dwordx4 v[8:11], v5, s[16:19], s25 offen
    s_waitcnt vmcnt(1)
    buffer_store_dwordx4 v[12:15], v6, s[16:19], s25 offen''')
    e.lab('prep_end')
    e('s_endpgm')
    return kernel_desc('prep_kernel', 96, 32)

def ln2_kernel(e, nsplit):
    kernel_begin(e, 'ln2_kernel')
    e(f'''s_load_dwordx2 s[4:5], s[0:1], {KA['x']}
    s_load_dwordx2 s[6:7], s[0:1], {KA['ws']}
    s_cmp_ge_u32 s2, 256
    s_cbranch_scc1 ln2_end
    s_waitcnt lgkmcnt(0)''')
    srd(e, 12, 4, 0, 2 * MB)
    srd(e, 16, 6, WS_PART, nsplit * 4 * MB)
    srd(e, 20, 6, WS_MOD, 3072 * 4)
    srd(e, 24, 6, WS_X1, 2 * MB)
    srd(e, 28, 6, WS_H2, 2 * MB)
    e('''v_and_b32 v1, 7, v0
    v_bfe_u32 v2, v0, 3, 1
    v_lshrrev_b32 v3, 4, v0
    v_lshlrev_b32 v5, 4, v1
    v_lshl_add_u32 v5, v2, 9, v5
    v_lshl_add_u32 v7, v3, 11, v5
    v_lshl_add_u32 v5, v3, 10, v5
    v_add_u32 v6, 0x4000, v5
    s_lshr_b32 s33, s2, 2
    s_and_b32 s34, s2, 3
    s_lshl_b32 s34, s34, 7
    s_lshl_b32 s35, s33, 16
    s_add_u32 s35, s35, s34
    s_lshl_b32 s33, s33, 15
    s_add_u32 s33, s33, s34''')
    P = 64
    for sp in range(nsplit):
        for pi in range(2):
            r = P + sp * 16 + pi * 8
            e(f'buffer_load_dwordx4 v[{r}:{r+3}], v7, s[16:19], s35 offen\nbuffer_load_dwordx4 v[{r+4}:{r+7}], v7, s[16:19], s35 offen offset:1024')
            e(f's_add_u32 s35, s35, {32768 if pi == 0 else 4*MB - 32768}')
    e('''v_lshlrev_b32 v4, 10, v1
    v_lshl_add_u32 v4, v2, 3, v4
    v_lshl_add_u32 v4, v3, 5, v4
    s_lshl_b32 s36, s2, 13
    buffer_load_dwordx2 v[8:9], v4, s[12:15], s36 offen
    buffer_load_dwordx2 v[10:11], v4, s[12:15], s36 offen offset:16
    buffer_load_dwordx2 v[12:13], v4, s[12:15], s36 offen offset:512
    buffer_load_dwordx2 v[14:15], v4, s[12:15], s36 offen offset:528
    v_lshlrev_b32 v4, 4, v2
    v_lshl_add_u32 v4, v3, 6, v4''')
    for base, idx in ((16, 2), (32, 4), (48, 3)):
        e(f's_mov_b32 s36, {idx*2048}')
        for q, off in enumerate((0, 32, 1024, 1056)):
            e(f'buffer_load_dwordx4 v[{base+4*q}:{base+4*q+3}], v4, s[20:23], s36 offen offset:{off}')
    e('s_waitcnt vmcnt(16)')
    for sp in range(1, nsplit):
        for i in range(16):
            e(f'v_add_f32 v{P+i}, v{P+i}, v{P+16*sp+i}')
    e('s_waitcnt vmcnt(8)')
    X = P + 16
    for i in range(8):
        unpack(e, X + 2 * i, X + 2 * i + 1, 8 + i)
    for i in range(16):
        e(f'v_fmac_f32 v{X+i}, v{P+i}, v{16+i}')
    for i in range(8):
        e(f'v_cvt_pk_bf16_f32 v{8+i}, v{X+2*i}, v{X+2*i+1}')
    e('buffer_store_dwordx4 v[8:11], v5, s[24:27], s33 offen\nbuffer_store_dwordx4 v[12:15], v6, s[24:27], s33 offen')
    for i in range(8):
        unpack(e, X + 2 * i, X + 2 * i + 1, 8 + i)
    e('s_waitcnt vmcnt(2)')
    layernorm_rows(e, [X + i for i in range(16)], 4, 0, 16, 0, [32 + i for i in range(16)], [48 + i for i in range(16)])
    for i in range(8):
        e(f'v_cvt_pk_bf16_f32 v{24+i}, v{X+2*i}, v{X+2*i+1}')
    e('buffer_store_dwordx4 v[24:27], v5, s[28:31], s33 offen\nbuffer_store_dwordx4 v[28:31], v6, s[28:31], s33 offen')
    e.lab('ln2_end')
    e('s_endpgm')
    return kernel_desc('ln2_kernel', P + 16 * max(nsplit, 2), 40)
```

```python
import sys
from common import *
import small, gemm, attn
N = 'adaLN_cond__compressed_kv_cla__glu_gated_bilinear__prompt'
ref = open(f'cdna_kernels/{N}.s.ref').read().split('\n')
hdr = [l for l in ref if l.startswith(';') and not l.startswith('; @launch')]
e = E()
d = []
L = []
d.append(small.prep_kernel(e)); L.append(('prep_kernel', 352, 256, 8192))
for f, n, g, b in ((gemm.kv_kernel, 'kv', 256, 512), (attn.attn_kernel, 'attn', 256, 512), (gemm.op_kernel, 'op', 256, 512)):
    x, lds = f(e); d.append(x); L.append((n + '_kernel', g, b, lds))
d.append(small.ln2_kernel(e, 4)); L.append(('ln2_kernel', 256, 256, 512))
for f, n, g, b in ((gemm.gu_kernel, 'gu', 224, 512), (gemm.dn_kernel, 'dn', 256, 256)):
    x, lds = f(e); d.append(x); L.append((n + '_kernel', g, b, lds))
out = '\n'.join(hdr) + '\n' + ''.join(f'; @launch kernel={n} grid=({g},1,1) block=({b},1,1) lds={l}\n' for n, g, b, l in L)
import re, os
ST = os.environ.get('ST', ' sc0 sc1')
e.l = [x + ST if 'buffer_store_dwordx4' in x and 'v10, s[20:23], s38' not in x else x for x in e.l]
out += '.amdgcn_target "amdgcn-amd-amdhsa--gfx950"\n' + e.text() + ''.join(d)
open(sys.argv[1] if len(sys.argv) > 1 else f'cdna_kernels/{N}.s', 'w').write(out)
```

```python
from common import *
from gemm import pack, G
FR, Q, NEGM, P, S0, S1, O = 16, 48, 80, 96, 112, 144, 176
MF = 'v_mfma_f32_32x32x16_bf16'
AH = 6

def kv_dma(which, slot):
    base = slot * 32768 + (65536 if which == 'V' else 0)
    srd_, so, cnt = ('s[24:27]', 's58', 's48') if which == 'K' else ('s[28:31]', 's59', 's49')
    o = []
    for i in range(4):
        pre = f's_add_u32 m0, s57, {base}\ns_nop 0\n' if i == 0 else ''
        post = f'\ns_add_u32 {so}, {so}, 0x8000\ns_cmp_eq_u32 {so}, s48\ns_cselect_b32 {so}, s49, {so}' if i == 3 else ''
        o.append(pre + f'buffer_load_dwordx4 v1, {srd_}, {so} offen offset:{i*1024} lds' + post)
    return o

def max_ops(Sn):
    o = [f'v_max3_f32 v5, v{Sn}, v{Sn+1}, v{Sn+2}']
    for i in range(3, 31, 2):
        o.append(f'v_max3_f32 v5, v5, v{Sn+i}, v{Sn+i+1}')
    o.append(f'v_max_f32 v5, v5, v{Sn+31}')
    return o

def rescale(e, Sn, lab, ret):
    e.lab(lab)
    e(f'''v_mov_b32 v9, v5
    s_nop 7
    v_permlane32_swap_b32 v9, v5
    s_nop 1
    v_max3_f32 v5, v5, v9, s51
    v_max_f32 v9, 0, v5
    v_mul_f32 v9, -1.0, v9
    v_exp_f32 v9, v9
    s_mov_b32 s50, 0x41f00000
    s_mov_b32 s51, 0''')
    for i in range(32):
        e(f'v_sub_f32 v{Sn+i}, v{Sn+i}, v5')
    for i in range(16):
        e(f'v_sub_f32 v{NEGM+i}, v{NEGM+i}, v5')
    for i in range(64):
        e(f'v_mul_f32 v{O+i}, v{O+i}, v9')
    e(f'v_mul_f32 v6, v6, v9\nv_mul_f32 v7, v7, v9\ns_branch {ret}')

def merge(e, par, ks, ret):
    send, keep = (O + 32, O) if ks == 0 else (O, O + 32)
    wa = ((par ^ 1) * 32768, par * 32768 + 65536)
    def ad(off):
        return ('v14', off - 65536) if off >= 65536 else ('v13', off)
    for i in range(8):
        a, off = ad(wa[ks] + i * 1024)
        e(f'ds_write_b128 {a}, {v(send+4*i,4)} offset:{off}')
    e('s_waitcnt lgkmcnt(0)\ns_barrier\nv_xor_b32 v9, 0x800, v15\nds_read_b64 v[10:11], v9')
    for i in range(8):
        a, off = ad(wa[ks ^ 1] + i * 1024)
        e(f'ds_read_b128 {v(send+4*i,4)}, {a} offset:{off}')
    e('''s_waitcnt lgkmcnt(8)
    v_min_f32 v9, v8, v10
    v_sub_f32 v8, v9, v8
    v_sub_f32 v10, v9, v10
    v_exp_f32 v8, v8
    v_exp_f32 v10, v10
    s_nop 0
    v_mul_f32 v6, v6, v8
    v_fmac_f32 v6, v11, v10
    v_rcp_f32 v6, v6
    s_nop 0
    v_mul_f32 v8, v8, v6
    v_mul_f32 v10, v10, v6''')
    for i in range(32):
        e(f'v_mul_f32 v{keep+i}, v{keep+i}, v8')
    e('s_waitcnt lgkmcnt(0)')
    for i in range(32):
        e(f'v_fmac_f32 v{keep+i}, v{send+i}, v10')
    pack(e, P, keep, 32)
    for i in range(4):
        e(f'buffer_store_dwordx4 {v(P+4*i,4)}, v1, s[20:23], s52 offen offset:{i*1024}')
    e(f's_branch {ret}')

def rd(par, m):
    if m < 16:
        t, d = m & 1, m >> 1
        return f'ds_read_b128 {v(FR+4*(m%8),4)}, v2 offset:{(par^1)*32768 + (t*8+d)*1024}'
    kk, dt = (m - 16) >> 2, (m - 16) & 3
    return f'ds_read_b128 {v(FR+4*(m%8),4)}, v3 offset:{par*32768 + (dt*4+kk)*1024}'

def body(e, par):
    Sc, Sn = (S0, S1) if par == 0 else (S1, S0)
    e.lab(f'at_it{par}')
    e(f's_cmp_lg_u32 s54, s55\ns_cbranch_scc1 at_nq{par}')
    for i in range(8):
        e(f'ds_read_b128 {v(Q+4*i,4)}, v12 offset:{i*1024}')
    e(f'v_mov_b32 v8, v{NEGM}')
    for i in range(16):
        e(f'v_mov_b32 v{NEGM+i}, 0')
    e('s_waitcnt lgkmcnt(0)')
    e.lab(f'at_nq{par}')
    def mf(m):
        f = v(FR + 4 * (m % 8), 4)
        if m < 16:
            t, d = m & 1, m >> 1
            return f'{MF} {v(Sn+16*t,16)}, {f}, {v(Q+4*d,4)}, {v(NEGM,16) if d == 0 else v(Sn+16*t,16)}'
        kk, dt = (m - 16) >> 2, (m - 16) & 3
        return f'{MF} {v(O+16*dt,16)}, {f}, {v(P+4*kk,4)}, {v(O+16*dt,16)}'
    dm = kv_dma('K', par) + kv_dma('V', par ^ 1)
    mx = max_ops(Sn)
    sl = [[] for _ in range(32)]
    for i in range(32):
        sl[i * 25 // 32].append(f'v_exp_f32 v{Sc+i}, v{Sc+i}')
    for i in range(16):
        sl[(2 * i + 1) * 25 // 32 + 1].append(f'v_cvt_pk_bf16_f32 v{P+i}, v{Sc+2*i}, v{Sc+2*i+1}\nv_add_f32 v6, v6, v{Sc+2*i}\nv_add_f32 v7, v7, v{Sc+2*i+1}')
    for i in range(8):
        sl[2 * i].append(dm[i])
    for i, x in enumerate(mx):
        sl[22 + i * 10 // 16].append(x)
    for m in range(32):
        if m == 16:
            e(f's_cmp_eq_u32 s54, s56\ns_cbranch_scc1 at_mask{par}')
            e.lab(f'at_mret{par}')
        if m == 28:
            e('s_waitcnt lgkmcnt(0)\ns_barrier' if '6' in os.environ.get('EXP', '') else 's_waitcnt vmcnt(0) lgkmcnt(0)\ns_barrier')
            for k in range(4): e(rd(par ^ 1, k))
        if m < 28:
            e(f's_waitcnt lgkmcnt({min(AH, 32 - m) - 1})')
        e(mf(m))
        if m + AH < 32 and '3' not in os.environ.get('EXP', ''):
            e(rd(par, m + AH))
        if m in (29, 30):
            e(rd(par ^ 1, m - 25))
        for x in sl[m]:
            X = os.environ.get('EXP', '')
            if '1' in X and 'buffer_load' in x: continue
            if '2' in X and 'v_exp' in x: continue
            if '4' in X and 'v_cvt' in x: continue
            e(x)
    e(f'''s_cmp_eq_u32 s54, s55
    s_cbranch_scc1 at_fin{par}''')
    e.lab(f'at_fret{par}')
    e(f'''v_cmp_lt_f32 vcc, s50, v5
    s_add_u32 s54, s54, 1
    s_cmp_lg_u64 vcc, 0
    s_cbranch_scc1 at_rs{par}''')
    if par == 1:
        e('s_branch at_it0')

def tails(e, par):
    Sn = S1 if par == 0 else S0
    rescale(e, Sn, f'at_rs{par}', f'at_it{par^1}')
    e.lab(f'at_mask{par}')
    e('s_mov_b32 s56, 15\nv_mov_b32 v9, 0xf149f2ca\ns_nop 7\ns_nop 3')
    for i in range(0, 32, 4):
        for k in range(4):
            r = i + k
            c = (r >> 4) * 32 + 8 * ((r & 15) >> 2) + (r & 3)
            e(f'v_cmp_gt_i32 s[{60+2*k}:{61+2*k}], {c}, v4')
        e('s_nop 0')
        for k in range(4):
            e(f'v_cndmask_b32 v{Sn+i+k}, v{Sn+i+k}, v9, s[{60+2*k}:{61+2*k}]')
    e(f's_branch at_mret{par}')
    e.lab(f'at_fin{par}')
    e(f'''v_add_f32 v6, v6, v7
    v_mov_b32 v7, v6
    s_nop 1
    v_permlane32_swap_b32 v7, v6
    s_nop 1
    v_add_f32 v6, v6, v7
    v_mov_b32 v9, v6
    s_nop 1
    ds_write_b64 v15, v[8:9]
    s_nop 3
    s_cmp_eq_u32 s42, 0
    s_cbranch_scc0 at_mg1_{par}''')
    merge(e, par, 0, f'at_mgd{par}')
    e.lab(f'at_mg1_{par}')
    merge(e, par, 1, f'at_mgd{par}')
    e.lab(f'at_mgd{par}')
    e('s_cmp_eq_u32 s54, 16\ns_cbranch_scc1 at_done\ns_barrier\ns_mov_b32 s55, 16\ns_mov_b32 s52, s53')
    e('s_mov_b32 s50, 0xff7fffff\ns_mov_b32 s51, 0xff7fffff\nv_mov_b32 v6, 0\nv_mov_b32 v7, 0')
    for i in range(64):
        e(f'v_mov_b32 v{O+i}, 0')
    e(f's_branch at_fret{par}')

def attn_kernel(e):
    g = G(8, 2, 2, 8, 2, 2, 4, 16, 8192, [(0, 0), (1, 0)], vb=65536)
    kernel_begin(e, 'attn_kernel')
    tick(e, 0)
    e(f'''s_load_dwordx2 s[8:9], s[0:1], {KA['wq']}
    s_load_dwordx2 s[6:7], s[0:1], {KA['ws']}
    s_cmp_ge_u32 s2, 256
    s_cbranch_scc1 at_end
    s_and_b32 s33, s2, 7
    s_lshl_b32 s33, s33, 2
    s_bfe_u32 s34, s2, 0x20003
    s_add_u32 s33, s33, s34
    s_lshr_b32 s34, s2, 5
    s_sub_u32 s35, 15, s34''')
    g.setup(e, f's_mul_i32 s43, s42, {g.PAN}')
    e('s_waitcnt lgkmcnt(0)')
    srd(e, 16, 8, 0, 4 * MB)
    srd(e, 12, 6, WS_H1, 2 * MB)
    e('''s_cmp_eq_u32 s42, 0
    s_cselect_b32 s46, s35, s34
    s_lshl_b32 s46, s46, 2
    s_add_u32 s46, s46, s41
    s_lshl_b32 s46, s46, 15
    s_lshl_b32 s47, s33, 8
    s_lshr_b32 s36, s40, 2
    s_lshl_b32 s36, s36, 7
    s_add_u32 s47, s47, s36
    s_and_b32 s36, s40, 3
    s_lshl_b32 s36, s36, 16
    s_add_u32 s47, s47, s36''')
    g.prologue(e)
    srd(e, 24, 6, WS_K, 16 * MB)
    srd(e, 28, 6, WS_V, 16 * MB)
    srd(e, 20, 6, WS_CTX, 16 * MB)
    e('''s_lshl_b32 s36, s40, 12
    s_add_u32 s36, s36, 0x18000
    v_add_u32 v110, s36, v1
    s_and_b32 s41, s40, 3
    s_lshr_b32 s42, s40, 2
    s_lshl_b32 s57, s40, 12
    s_lshl_b32 s49, s33, 19
    s_add_u32 s49, s49, s57
    s_mov_b32 s58, s49
    s_mov_b32 s59, s49
    s_add_u32 s48, s35, 1
    s_lshl_b32 s48, s48, 15
    s_add_u32 s48, s48, s49
    s_lshl_b32 s36, s41, 18
    s_lshl_b32 s37, s33, 13
    s_add_u32 s36, s36, s37
    s_lshl_b32 s37, s42, 12
    s_add_u32 s36, s36, s37
    s_lshl_b32 s52, s35, 20
    s_add_u32 s52, s52, s36
    s_lshl_b32 s53, s34, 20
    s_add_u32 s53, s53, s36
    s_mov_b32 s54, 0
    s_mov_b32 s55, s35
    s_sub_u32 s56, s35, 1
    s_mov_b32 s50, 0xff7fffff
    s_mov_b32 s51, 0xff7fffff''')
    for i in range(64):
        e(f'v_mov_b32 v{O+i}, 0')
    g.loop(e, 'WA', {12: kv_dma('K', 0), 13: kv_dma('K', 1)})
    e('s_barrier')
    for x in kv_dma('V', 0): e(x)
    for i in range(64):
        e(f'v_mul_f32 v{g.ACC+i}, 0x3e0293ee, v{g.ACC+i}')
    pack(e, S1, g.ACC, 64)
    for i in range(8):
        e(f'ds_write_b128 v110, {v(S1+4*i,4)} offset:{(i>>2)*32768+(i&3)*1024}')
    e('''v_lshrrev_b32 v5, 4, v1
    v_lshrrev_b32 v4, 5, v5
    v_and_b32 v5, 31, v5
    v_lshlrev_b32 v4, 2, v4
    v_sub_u32 v4, v5, v4
    s_lshl_b32 s36, s41, 5
    s_lshl_b32 s37, s42, 6
    s_sub_u32 s36, s36, s37
    v_add_u32 v4, s36, v4
    v_lshlrev_b32 v15, 3, v0
    v_add_u32 v15, 0x20000, v15
    s_lshl_b32 s36, s42, 14
    v_add_u32 v2, s36, v1
    v_add_u32 v3, 0x10000, v2
    s_lshl_b32 s36, s41, 13
    v_add_u32 v13, s36, v1
    v_add_u32 v14, 0x10000, v13
    v_add_u32 v12, 0x20000, v13
    s_waitcnt vmcnt(8) lgkmcnt(0)
    s_barrier''')
    for i in range(8):
        e(f'ds_read_b128 {v(Q+4*i,4)}, v14 offset:{32768+i*1024}')
    for i in range(16):
        e(f'v_mov_b32 v{NEGM+i}, 0')
    e('v_mov_b32 v6, 0\nv_mov_b32 v7, 0\ns_waitcnt lgkmcnt(0)')
    for h in range(2):
        for m in range(8):
            e(f'ds_read_b128 {v(FR+4*m,4)}, v2 offset:{((m&1)*8+h*4+(m>>1))*1024}')
        for m in range(8):
            t, d = m & 1, h * 4 + (m >> 1)
            e(f's_waitcnt lgkmcnt({7-m})\n{MF} {v(S0+16*t,16)}, {v(FR+4*m,4)}, {v(Q+4*d,4)}, {"0" if d == 0 else v(S0+16*t,16)}')
    e('s_waitcnt vmcnt(0)\ns_barrier')
    tick(e, 3)
    for k in range(AH): e(rd(0, k))
    e('s_nop 7')
    for x in max_ops(S0): e(x)
    e('s_branch at_rs1')
    body(e, 0)
    body(e, 1)
    tails(e, 0)
    tails(e, 1)
    e.lab('at_done')
    e('s_waitcnt vmcnt(0)')
    tick(e, 4)
    tick_store(e, 5)
    e.lab('at_end')
    e('s_endpgm')
    return kernel_desc('attn_kernel', 240), 160 * 1024
```

```python
MB = 1 << 20
WS_MOD = 0
WS_CKV = 1 * MB
WS_H1 = 3 * MB
WS_H2 = 5 * MB
WS_X1 = 7 * MB
WS_HH = 9 * MB
WS_K = 16 * MB
WS_V = 32 * MB
WS_CTX = 48 * MB
WS_PART = 64 * MB
KA = dict(x=0, ckv=8, wq=16, wuk=24, wuv=32, wo=40, bx=48, wg=56, wu=64, wd=72, c=80, wmod=88, out=96, dbg=104, ws=112)

class E:
    def __init__(self):
        self.l = []
        self.n = 0
    def __call__(self, s):
        for x in s.strip().split('\n'):
            self.l.append('    ' + x.strip())
    def lab(self, s):
        self.l.append(s + ':')
    def uniq(self, p):
        self.n += 1
        return f'{p}_{self.n}'
    def text(self):
        return '\n'.join(self.l) + '\n'

def v(a, n=1):
    return f'v{a}' if n == 1 else f'v[{a}:{a+n-1}]'
def s(a, n=1):
    return f's{a}' if n == 1 else f's[{a}:{a+n-1}]'

def srd(e, d, base, off, size):
    if off:
        e(f's_add_u32 s{d}, s{base}, {off}\ns_addc_u32 s{d+1}, s{base+1}, 0')
    else:
        e(f's_mov_b32 s{d}, s{base}\ns_mov_b32 s{d+1}, s{base+1}')
    e(f's_mov_b32 s{d+2}, {size}\ns_mov_b32 s{d+3}, 0x00020000')

def kernel_begin(e, name):
    e.l.append(f'.text\n.globl {name}\n.p2align 8\n.type {name},@function\n{name}:')

def kernel_desc(name, nv, ns=102):
    acc = (nv + 3) // 4 * 4
    return f'''.section .rodata,"a"
.p2align 6
.amdhsa_kernel {name}
  .amdhsa_next_free_vgpr {nv}
  .amdhsa_next_free_sgpr {ns}
  .amdhsa_accum_offset {acc}
  .amdhsa_group_segment_fixed_size 0
  .amdhsa_kernarg_size 120
  .amdhsa_user_sgpr_count 2
  .amdhsa_user_sgpr_kernarg_segment_ptr 1
  .amdhsa_system_sgpr_workgroup_id_x 1
.end_amdhsa_kernel
'''

def unpack(e, lo, hi, src):
    e(f'v_and_b32 v{hi}, 0xffff0000, v{src}\nv_lshlrev_b32 v{lo}, 16, v{src}')

def xor_reduce_row8(e, val, tmp):
    e(f'ds_swizzle_b32 v{tmp}, v{val} offset:0x201F\ns_waitcnt lgkmcnt(0)\nv_add_f32 v{val}, v{val}, v{tmp}')
    e(f'ds_swizzle_b32 v{tmp}, v{val} offset:0x401F\ns_waitcnt lgkmcnt(0)\nv_add_f32 v{val}, v{val}, v{tmp}')
    e(f'v_mov_b32 v{tmp}, v{val}\ns_nop 1\nv_permlane32_swap_b32 v{tmp}, v{val}\ns_nop 1\nv_add_f32 v{val}, v{val}, v{tmp}')

def layernorm_rows(e, xs, nw, lds_off, vt, vtid, sc, sh):
    a, b, c, d = vt, vt + 1, vt + 2, vt + 3
    def allsum(off):
        xor_reduce_row8(e, a, b)
        e(f'v_lshrrev_b32 v{b}, 6, v{vtid}\nv_lshlrev_b32 v{b}, 5, v{b}\nv_and_b32 v{c}, 7, v{vtid}\nv_lshlrev_b32 v{c}, 2, v{c}')
        e(f'v_add_u32 v{b}, v{b}, v{c}\nds_write_b32 v{b}, v{a} offset:{off}\ns_waitcnt lgkmcnt(0)\ns_barrier')
        e(f'ds_read_b32 v{a}, v{c} offset:{off}')
        for w in range(1, nw):
            e(f'ds_read_b32 v{b}, v{c} offset:{off + 32 * w}\ns_waitcnt lgkmcnt(0)\nv_add_f32 v{a}, v{a}, v{b}')
    e(f'v_add_f32 v{a}, v{xs[0]}, v{xs[1]}')
    for x in xs[2:]:
        e(f'v_add_f32 v{a}, v{a}, v{x}')
    allsum(lds_off)
    e(f'v_mul_f32 v{d}, 0x3b000000, v{a}')
    for x in xs:
        e(f'v_sub_f32 v{x}, v{x}, v{d}')
    e(f'v_mul_f32 v{a}, v{xs[0]}, v{xs[0]}')
    for x in xs[1:]:
        e(f'v_fmac_f32 v{a}, v{x}, v{x}')
    allsum(lds_off + 32 * nw)
    e(f'v_mov_b32 v{b}, 0x3727c5ac\nv_fmac_f32 v{b}, 0x3b000000, v{a}\nv_rsq_f32 v{b}, v{b}\ns_nop 0')
    for x, p, q in zip(xs, sc, sh):
        e(f'v_mul_f32 v{x}, v{x}, v{b}\nv_fma_f32 v{x}, v{x}, v{p}, v{q}')

import os
TICK = bool(os.environ.get('TICK'))
def tick(e, i):
    if TICK:
        e(f's_memtime s[{70+4*i}:{71+4*i}]\ns_memrealtime s[{72+4*i}:{73+4*i}]\ns_waitcnt lgkmcnt(0)')
def tick_store(e, n):
    if not TICK: return
    l = e.uniq('tk')
    e(f's_and_b32 s3, s2, 127\ns_cmp_lg_u32 s3, 0\ns_cbranch_scc1 {l}\ns_cmp_lg_u32 s40, 0\ns_cbranch_scc1 {l}\ns_load_dwordx2 s[4:5], s[0:1], 104\ns_waitcnt lgkmcnt(0)')
    srd(e, 96, 4, 0, 256)
    e('v_mov_b32 v2, 0')
    for i in range(n):
        e(f'v_mov_b32 v4, s{70+4*i}\nv_mov_b32 v5, s{72+4*i}\nbuffer_store_dwordx2 v[4:5], v2, s[96:99], s2 offen offset:{8*i}\ns_nop 1')
    e('s_waitcnt vmcnt(0)')
    e.lab(l)
```

```python
from common import *

def interleave(main, extra):
    out = []
    n, m = len(main), len(extra)
    for i, x in enumerate(main):
        out.append(x)
        out += [extra[k] for k in range(m) if k * n // m == i]
    return out

class G:
    def __init__(s, NW, WC, TR, RT, KS, NP, NS, nst, ld, wtiles, base=0, vb=0):
        s.__dict__.update(locals())
        s.BK = KS * 16
        s.ACT = RT * KS * 1024
        s.PAN = s.BK * 128
        s.STG = s.ACT + NP * s.PAN
        s.na = RT * KS // NW
        s.nwd = NP * (s.BK // 8) // NW
        s.L = s.na + s.nwd
        s.TC = len(wtiles)
        s.lds = base + NS * s.STG
        s.F = 12
        s.FS = (TR + s.TC) * 4
        s.ACC = s.F + 2 * s.FS
        s.NV = s.ACC + TR * s.TC * 16
    def acc(s, tr, tc):
        return s.ACC + (tr * s.TC + tc) * 16
    def setup(s, e, wpan):
        lg = {1: 0, 2: 1, 4: 2, 8: 3}
        e(f'''v_and_b32 v1, 63, v0
        v_lshrrev_b32 v2, 6, v0
        s_nop 0
        v_readfirstlane_b32 s40, v2
        v_lshrrev_b32 v8, 3, v1
        v_and_b32 v9, 7, v1
        v_bfe_u32 v10, v1, 4, 1
        v_lshrrev_b32 v11, 2, v9
        v_xor_b32 v10, v10, v11
        v_and_b32 v9, 3, v9
        v_mul_u32_u24 v8, {s.ld}, v8
        v_lshl_add_u32 v8, v10, 6, v8
        v_lshl_add_u32 v8, v9, 4, v8
        s_lshr_b32 s41, s40, {lg[s.WC]}
        s_and_b32 s42, s40, {s.WC - 1}
        v_lshrrev_b32 v4, 5, v1
        v_lshlrev_b32 v4, 9, v4
        v_bfe_u32 v5, v1, 2, 2
        v_lshl_add_u32 v4, v5, 7, v4
        v_bfe_u32 v5, v1, 4, 1
        v_lshl_add_u32 v4, v5, 5, v4
        v_and_b32 v5, 3, v1
        v_lshl_add_u32 v4, v5, 3, v4
        v_bfe_u32 v5, v1, 3, 1
        v_lshl_add_u32 v4, v5, 6, v4
        v_lshlrev_b32 v1, 4, v1
        s_mul_i32 s43, s41, {s.TR * s.KS * 1024}
        s_add_u32 s43, s43, {s.vb}
        v_add_u32 v2, s43, v1
        v_add_u32 v3, 0x10000, v2
        v_add_u32 v4, {s.vb}, v4''')
        if wpan:
            e(wpan + '\nv_add_u32 v4, s43, v4')
        e('v_xor_b32 v6, 64, v4\nv_add_u32 v5, 0x10000, v4\nv_add_u32 v7, 0x10000, v6')
        for i in range(1, s.nwd):
            e(f'v_add_u32 v{8+i}, {i * (8 * s.ld - 1024)}, v8')
        e(f's_mul_i32 s44, s40, {s.na * 1024}\ns_mul_i32 s45, s40, {s.nwd * 1024}\ns_add_u32 s45, s45, {s.ACT + s.vb}\ns_add_u32 s44, s44, {s.vb}')
    def dma(s, st):
        b = s.base + (st % s.NS) * s.STG
        o = []
        for i in range(s.na):
            pre = f's_add_u32 m0, s44, {b}\ns_nop 0\n' if i == 0 else ''
            post = f'\ns_add_u32 s46, s46, {s.KS * 1024}' if i == s.na - 1 else ''
            o.append(pre + f'buffer_load_dwordx4 v1, s[12:15], s46 offen offset:{i*1024} lds' + post)
        for i in range(s.nwd):
            pre = f's_add_u32 m0, s45, {b}\ns_nop 0\n' if i == 0 else ''
            post = f'\ns_add_u32 s47, s47, {s.BK * s.ld}' if i == s.nwd - 1 else ''
            o.append(pre + f'buffer_load_dwordx4 v{8+i}, s[16:19], s47 offen offset:{i*1024} lds' + post)
        return o
    def rd(s, op, d, n, a, off):
        if off >= 65536:
            a += 1; off -= 65536
        return f'{op} {v(d, n)}, v{a} offset:{off}'
    def reads(s, st, ks, fs):
        b = s.base + (st % s.NS) * s.STG
        f = s.F + fs * s.FS
        o = []
        for tc, (j, po) in enumerate(s.wtiles):
            for h in range(2):
                o.append(s.rd('ds_read_b64_tr_b16', f + (s.TR + tc) * 4 + 2 * h, 2, 4 + 2 * j, b + s.ACT + po + ks * 2048 + h * 1024))
            if tc == 0:
                o.append(s.rd('ds_read_b128', f, 4, 2, b + ks * 1024))
        for tr in range(1, s.TR):
            o.append(s.rd('ds_read_b128', f + tr * 4, 4, 2, b + (tr * s.KS + ks) * 1024))
        return o
    def mfmas(s, fs, mode, first=False):
        f = s.F + fs * s.FS
        o = []
        for tr in range(s.TR):
            for tc in range(s.TC):
                a, w = v(f + tr * 4, 4), v(f + (s.TR + tc) * 4, 4)
                if mode == 'AW':
                    a, w = w, a
                c = v(s.acc(tr, tc), 16)
                o.append(f'v_mfma_f32_32x32x16_bf16 {c}, {w}, {a}, {"0" if first else c}')
        return o
    def prologue(s, e):
        for st in range(s.NS):
            for x in s.dma(st):
                e(x)
    def loop(s, e, mode, extra={}):
        xc = 0
        R = len(s.reads(0, 0, 0))
        e(f's_waitcnt vmcnt({(s.NS - 1) * s.L})\ns_barrier')
        tick(e, 1)
        for x in s.reads(0, 0, 0): e(x)
        fs = 0
        for st in range(s.nst):
            for ks in range(s.KS - 1):
                for x in s.reads(st, ks + 1, fs ^ 1): e(x)
                e(f's_waitcnt lgkmcnt({R})')
                for x in s.mfmas(fs, mode, st == 0 and ks == 0): e(x)
                fs ^= 1
            if st + 1 < s.nst:
                pend = min(s.NS - 2, s.nst - st - 2)
                e(f's_waitcnt vmcnt({pend * s.L + xc}) lgkmcnt(0)\ns_barrier')
                for x in s.reads(st + 1, 0, fs ^ 1): e(x)
            else:
                e('s_waitcnt lgkmcnt(0)')
            d = s.dma(st + s.NS) if st + s.NS < s.nst else []
            d = d + extra.get(st, []); xc += len(extra.get(st, []))
            for x in interleave(s.mfmas(fs, mode), d): e(x)
            fs ^= 1
        e('s_nop 7\ns_nop 7')
        tick(e, 2)

def pack(e, d, a, n=16):
    for i in range(n // 2):
        e(f'v_cvt_pk_bf16_f32 v{d+i}, v{a+2*i}, v{a+2*i+1}')

def kv_kernel(e):
    g = G(8, 4, 4, 8, 2, 4, 4, 16, 8192, [(0, 0), (1, 0)], base=1024)
    kernel_begin(e, 'kv_kernel')
    tick(e, 0)
    e(f'''s_load_dwordx2 s[4:5], s[0:1], {KA['x']}
    s_load_dwordx4 s[8:11], s[0:1], {KA['wuk']}
    s_load_dwordx2 s[6:7], s[0:1], {KA['ws']}
    s_cmp_ge_u32 s2, 256
    s_cbranch_scc1 kv_end
    s_and_b32 s33, s2, 7
    s_lshl_b32 s33, s33, 2
    s_bfe_u32 s34, s2, 0x20003
    s_add_u32 s33, s33, s34
    s_lshr_b32 s34, s2, 5''')
    g.setup(e, f's_mul_i32 s43, s42, {g.PAN}')
    e('''s_waitcnt lgkmcnt(0)
    s_cmp_ge_u32 s33, 16
    s_cselect_b32 s8, s10, s8
    s_cselect_b32 s9, s11, s9
    s_and_b32 s35, s33, 15''')
    srd(e, 12, 6, WS_CKV, 2 * MB)
    srd(e, 16, 8, 0, 4 * MB)
    srd(e, 20, 4, 0, 2 * MB)
    srd(e, 24, 6, WS_MOD, 3072 * 4)
    srd(e, 28, 6, WS_H1, 2 * MB)
    A = g.ACC
    e(f'''v_and_b32 v{A}, 7, v0
    v_bfe_u32 v{A+1}, v0, 3, 1
    v_lshrrev_b32 v{A+2}, 4, v0
    v_lshlrev_b32 v{A+3}, 10, v{A}
    v_lshl_add_u32 v{A+3}, v{A+1}, 3, v{A+3}
    v_lshl_add_u32 v{A+3}, v{A+2}, 5, v{A+3}
    s_lshl_b32 s36, s2, 13
    buffer_load_dwordx2 v[{A+8}:{A+9}], v{A+3}, s[20:23], s36 offen
    buffer_load_dwordx2 v[{A+10}:{A+11}], v{A+3}, s[20:23], s36 offen offset:16
    v_lshlrev_b32 v{A+3}, 4, v{A+1}
    v_lshl_add_u32 v{A+3}, v{A+2}, 6, v{A+3}
    buffer_load_dwordx4 v[{A+16}:{A+19}], v{A+3}, s[24:27], 0 offen
    buffer_load_dwordx4 v[{A+20}:{A+23}], v{A+3}, s[24:27], 0 offen offset:32
    buffer_load_dwordx4 v[{A+24}:{A+27}], v{A+3}, s[24:27], 0 offen offset:2048
    buffer_load_dwordx4 v[{A+28}:{A+31}], v{A+3}, s[24:27], 0 offen offset:2080
    v_lshlrev_b32 v{A+3}, 4, v{A}
    v_lshl_add_u32 v{A+3}, v{A+1}, 9, v{A+3}
    v_lshl_add_u32 v{A+3}, v{A+2}, 10, v{A+3}
    s_lshl_b32 s46, s34, 3
    s_add_u32 s46, s46, s40
    s_lshl_b32 s46, s46, 15
    s_lshr_b32 s47, s40, 1
    s_lshl_b32 s47, s47, 7
    s_and_b32 s36, s40, 1
    s_lshl_b32 s36, s36, 17
    s_add_u32 s47, s47, s36
    s_lshl_b32 s36, s35, 9
    s_add_u32 s47, s47, s36''')
    g.prologue(e)
    e(f's_waitcnt vmcnt({g.NS * g.L})')
    for i in range(4):
        unpack(e, A + 32 + 2 * i, A + 33 + 2 * i, A + 8 + i)
    layernorm_rows(e, [A + 32 + i for i in range(8)], 8, 0, A + 4, 0, [A + 24 + i for i in range(8)], [A + 16 + i for i in range(8)])
    pack(e, A + 8, A + 32, 8)
    e(f'''s_lshr_b32 s36, s2, 2
    s_lshl_b32 s36, s36, 15
    s_and_b32 s37, s2, 3
    s_lshl_b32 s37, s37, 7
    s_add_u32 s36, s36, s37
    buffer_store_dwordx4 v[{A+8}:{A+11}], v{A+3}, s[28:31], s36 offen
    s_lshl_b32 s36, s35, 1
    s_lshr_b32 s37, s42, 1
    s_add_u32 s36, s36, s37
    s_lshl_b32 s36, s36, 19
    s_lshl_b32 s37, s34, 16
    s_add_u32 s36, s36, s37
    s_lshl_b32 s37, s41, 15
    s_add_u32 s36, s36, s37
    s_and_b32 s37, s42, 1
    s_cmp_ge_u32 s33, 16
    s_cbranch_scc1 kv_v
    s_lshl_b32 s37, s37, 12
    s_add_u32 s36, s36, s37''')
    srd(e, 20, 6, WS_K, 16 * MB)
    tick(e, 1)
    g.loop(e, 'WA')
    tick(e, 2)
    for tr in range(4):
        for tc in range(2):
            d = g.F + ((tr * 2 + tc) % 4) * 8
            pack(e, d, g.acc(tr, tc))
            e(f'buffer_store_dwordx4 {v(d,4)}, v1, s[20:23], s36 offen offset:{tc*2048}\nbuffer_store_dwordx4 {v(d+4,4)}, v1, s[20:23], s36 offen offset:{tc*2048+1024}')
        e('s_add_u32 s36, s36, 8192')
    if TICK: e('s_waitcnt vmcnt(0)')
    tick(e, 3)
    tick_store(e, 4)
    e('s_endpgm')
    e.lab('kv_v')
    e('s_lshl_b32 s37, s37, 13\ns_add_u32 s36, s36, s37')
    srd(e, 20, 6, WS_V, 16 * MB)
    g.loop(e, 'AW')
    i = 0
    for t2 in range(2):
        for tc in range(2):
            for t1 in range(2):
                d = g.F + (i % 4) * 8; i += 1
                pack(e, d, g.acc(t2 * 2 + t1, tc))
                e(f'buffer_store_dwordx4 {v(d,4)}, v1, s[20:23], s36 offen offset:{t1*2048}\nbuffer_store_dwordx4 {v(d+4,4)}, v1, s[20:23], s36 offen offset:{t1*2048+1024}')
            e(f's_add_u32 s36, s36, {4096 if tc == 0 else 16384 - 4096}')
    e.lab('kv_end')
    e('s_endpgm')
    return kernel_desc('kv_kernel', g.NV), g.lds

def op_kernel(e):
    g = G(4, 2, 2, 4, 4, 2, 4, 16, 1024, [(0, 0), (1, 0)])
    kernel_begin(e, 'op_kernel')
    tick(e, 0)
    e(f'''s_load_dwordx2 s[8:9], s[0:1], {KA['wo']}
    s_load_dwordx2 s[6:7], s[0:1], {KA['ws']}
    s_cmp_ge_u32 s2, 256
    s_cbranch_scc1 op_end
    s_bfe_u32 s33, s2, 0x20001
    s_and_b32 s34, s2, 1
    s_lshl_b32 s34, s34, 3
    s_lshr_b32 s35, s2, 5
    s_add_u32 s34, s34, s35
    s_bfe_u32 s35, s2, 0x20003''')
    g.setup(e, f's_mul_i32 s43, s42, {g.PAN}')
    e('s_waitcnt lgkmcnt(0)')
    srd(e, 12, 6, WS_CTX, 16 * MB)
    srd(e, 16, 8, 0, 4 * MB)
    srd(e, 20, 6, WS_PART, 16 * MB)
    e('''s_lshl_b32 s46, s34, 2
    s_add_u32 s46, s46, s40
    s_lshl_b32 s46, s46, 18
    s_lshl_b32 s36, s33, 16
    s_add_u32 s46, s46, s36
    s_lshr_b32 s47, s40, 1
    s_lshl_b32 s47, s47, 7
    s_and_b32 s36, s40, 1
    s_lshl_b32 s36, s36, 15
    s_add_u32 s47, s47, s36
    s_lshl_b32 s36, s35, 8
    s_add_u32 s47, s47, s36
    s_lshl_b32 s36, s33, 20
    s_add_u32 s47, s47, s36''')
    g.prologue(e)
    e('''s_lshl_b32 s36, s33, 22
    s_lshl_b32 s37, s34, 18
    s_add_u32 s36, s36, s37
    s_lshl_b32 s37, s41, 17
    s_add_u32 s36, s36, s37
    s_lshl_b32 s37, s35, 14
    s_add_u32 s36, s36, s37
    s_lshl_b32 s37, s42, 13
    s_add_u32 s36, s36, s37''')
    g.loop(e, 'WA')
    for tr in range(2):
        for tc in range(2):
            for q in range(4):
                e(f'buffer_store_dwordx4 {v(g.acc(tr,tc)+4*q,4)}, v1, s[20:23], s36 offen offset:{q*1024}')
            e(f's_add_u32 s36, s36, {4096 if tc == 0 else 65536 - 4096}')
    if TICK: e('s_waitcnt vmcnt(0)')
    tick(e, 3)
    tick_store(e, 4)
    e.lab('op_end')
    e('s_endpgm')
    return kernel_desc('op_kernel', g.NV), g.lds

def gu_kernel(e):
    g = G(8, 2, 2, 8, 2, 2, 5, 16, 3584, [(0, 0), (0, 4096)])
    kernel_begin(e, 'gu_kernel')
    tick(e, 0)
    e(f'''s_load_dwordx4 s[8:11], s[0:1], {KA['wg']}
    s_load_dwordx2 s[6:7], s[0:1], {KA['ws']}
    s_cmp_ge_u32 s2, 224
    s_cbranch_scc1 gu_end
    s_and_b32 s34, s2, 7
    s_lshr_b32 s35, s2, 3''')
    g.setup(e, None)
    e('''s_lshl_b32 s43, s42, 6
    v_xor_b32 v4, s43, v4
    v_xor_b32 v5, s43, v5
    s_waitcnt lgkmcnt(0)
    s_cmp_ge_u32 s40, 4
    s_cselect_b32 s8, s10, s8
    s_cselect_b32 s9, s11, s9''')
    srd(e, 12, 6, WS_H2, 2 * MB)
    srd(e, 16, 8, 0, 512 * 3584)
    srd(e, 20, 6, WS_HH, 7 * MB)
    e(f'''s_lshl_b32 s46, s34, 3
    s_add_u32 s46, s46, s40
    s_lshl_b32 s46, s46, 15
    s_and_b32 s47, s40, 3
    s_mul_i32 s47, s47, {8*3584}
    s_lshl_b32 s36, s35, 7
    s_add_u32 s47, s47, s36''')
    g.prologue(e)
    e(f'''s_lshl_b32 s36, s34, 3
    s_lshl_b32 s37, s41, 1
    s_add_u32 s36, s36, s37
    s_mul_i32 s36, s36, {112*1024}
    s_lshl_b32 s37, s35, 12
    s_add_u32 s36, s36, s37
    s_lshl_b32 s37, s42, 11
    s_add_u32 s36, s36, s37''')
    g.loop(e, 'WA')
    for tr in range(2):
        a, b = g.acc(tr, 0), g.acc(tr, 1)
        for i in range(16):
            e(f'v_mul_f32 v{a+i}, v{a+i}, v{b+i}')
        d = g.F + tr * 8
        pack(e, d, a)
        e(f'buffer_store_dwordx4 {v(d,4)}, v1, s[20:23], s36 offen\nbuffer_store_dwordx4 {v(d+4,4)}, v1, s[20:23], s36 offen offset:1024\ns_add_u32 s36, s36, {112*1024}')
    if TICK: e('s_waitcnt vmcnt(0)')
    tick(e, 3)
    tick_store(e, 4)
    e.lab('gu_end')
    e('s_endpgm')
    return kernel_desc('gu_kernel', g.NV), g.lds

def dn_kernel(e):
    g = G(4, 2, 1, 2, 4, 1, 7, 28, 1024, [(0, 0)])
    kernel_begin(e, 'dn_kernel')
    tick(e, 0)
    e(f'''s_load_dwordx2 s[8:9], s[0:1], {KA['wd']}
    s_load_dwordx2 s[6:7], s[0:1], {KA['ws']}
    s_load_dwordx2 s[4:5], s[0:1], {KA['out']}
    s_cmp_ge_u32 s2, 256
    s_cbranch_scc1 dn_end
    s_and_b32 s34, s2, 7
    s_lshl_b32 s34, s34, 2
    s_bfe_u32 s35, s2, 0x20003
    s_add_u32 s34, s34, s35
    s_lshr_b32 s35, s2, 5''')
    g.setup(e, None)
    e('''s_lshl_b32 s43, s42, 6
    v_xor_b32 v4, s43, v4
    v_xor_b32 v5, s43, v5
    s_waitcnt lgkmcnt(0)''')
    srd(e, 12, 6, WS_HH, 7 * MB)
    srd(e, 16, 8, 0, 1792 * 1024)
    srd(e, 20, 4, 0, 2 * MB)
    srd(e, 24, 6, WS_X1, 2 * MB)
    srd(e, 28, 6, WS_MOD, 3072 * 4)
    X = g.NV
    e(f'''s_lshl_b32 s36, s34, 1
    s_add_u32 s36, s36, s41
    s_lshl_b32 s37, s35, 1
    s_add_u32 s37, s37, s42
    s_lshl_b32 s38, s36, 15
    s_lshl_b32 s39, s37, 11
    s_add_u32 s39, s38, s39
    buffer_load_dwordx4 v[{X}:{X+3}], v1, s[24:27], s39 offen
    buffer_load_dwordx4 v[{X+4}:{X+7}], v1, s[24:27], s39 offen offset:1024
    v_lshrrev_b32 v10, 9, v1
    v_lshlrev_b32 v10, 4, v10
    s_lshl_b32 s39, s37, 7
    s_add_u32 s39, s39, {5*2048}''')
    for q in range(4):
        e(f'buffer_load_dwordx4 {v(X+8+4*q,4)}, v10, s[28:31], s39 offen offset:{32*q}')
    e(f'''v_and_b32 v11, 0x1f0, v1
    v_lshl_add_u32 v10, v11, 6, v10
    s_lshl_b32 s37, s37, 6
    s_add_u32 s38, s38, s37
    s_mul_i32 s46, s36, {112*1024}
    s_lshl_b32 s37, s42, 11
    s_add_u32 s46, s46, s37
    s_lshl_b32 s47, s40, 14
    s_lshl_b32 s37, s35, 7
    s_add_u32 s47, s47, s37''')
    g.prologue(e)
    g.loop(e, 'WA')
    a = g.acc(0, 0)
    F = g.F
    for i in range(8):
        unpack(e, F + 2 * i, F + 2 * i + 1, X + i)
    for i in range(16):
        e(f'v_fmac_f32 v{F+i}, v{a+i}, v{X+8+i}')
    pack(e, X, F)
    e('s_nop 1')
    for t in range(2):
        e(f'v_permlane32_swap_b32 v{X+4*t}, v{X+4*t+2}\nv_permlane32_swap_b32 v{X+4*t+1}, v{X+4*t+3}')
    e(f's_nop 1\nbuffer_store_dwordx4 {v(X,4)}, v10, s[20:23], s38 offen\nbuffer_store_dwordx4 {v(X+4,4)}, v10, s[20:23], s38 offen offset:32')
    if TICK: e('s_waitcnt vmcnt(0)')
    tick(e, 3)
    tick_store(e, 4)
    e.lab('dn_end')
    e('s_endpgm')
    return kernel_desc('dn_kernel', X + 24), g.lds
```

```python
from common import *
from gemm import pack, G, ROT16
FR, Q, NEGM, P, S0, S1, O = 16, 48, 80, 96, 112, 144, 176
MF = 'v_mfma_f32_32x32x16_bf16'
AH = 6

def kv_dma(which, slot):
    base = slot * 32768 + (65536 if which == 'V' else 0)
    srd_, so, cnt = ('s[24:27]', 's58', 's48') if which == 'K' else ('s[28:31]', 's59', 's49')
    o = []
    for i in range(4):
        pre = f's_add_u32 m0, s57, {base}\ns_nop 0\n' if i == 0 else ''
        post = f'\ns_add_u32 {so}, {so}, 0x8000\ns_cmp_eq_u32 {so}, s48\ns_cselect_b32 {so}, s49, {so}' if i == 3 else ''
        o.append(pre + f'buffer_load_dwordx4 v1, {srd_}, {so} offen offset:{i*1024} lds' + post)
    return o

def max_ops(Sn):
    o = [f'v_max3_f32 v5, v{Sn}, v{Sn+1}, v{Sn+2}']
    for i in range(3, 31, 2):
        o.append(f'v_max3_f32 v5, v5, v{Sn+i}, v{Sn+i+1}')
    o.append(f'v_max_f32 v5, v5, v{Sn+31}')
    return o

def rescale(e, Sn, lab, ret, first=False):
    e.lab(lab)
    e(f'''v_mov_b32 v9, v5
    s_nop 7
    v_permlane32_swap_b32 v9, v5
    s_nop 1''')
    if first:
        e('v_max_f32 v5, v5, v9')
    else:
        e('v_max3_f32 v5, v5, v9, 0\nv_mul_f32 v9, -1.0, v5\nv_exp_f32 v9, v9')
    for i in range(16):
        e(f'v_sub_f32 v{NEGM+i}, v{NEGM+i}, v5')
    for i in range(32):
        e(f'v_sub_f32 v{Sn+i}, v{Sn+i}, v5')
    if not first:
        for i in range(64):
            e(f'v_mul_f32 v{O+i}, v{O+i}, v9')
        e(f'v_mul_f32 v6, v6, v9\nv_mul_f32 v7, v7, v9')
    e(f's_branch {ret}')

def last_body(e):
    e.lab('at_last')
    e(f's_waitcnt lgkmcnt(0)\nv_mov_b32 v8, v{NEGM}')
    for m in range(16, 24): e(rd(0, m))
    def sm(i):
        e(f'v_exp_f32 v{S0+2*i}, v{S0+2*i}\nv_exp_f32 v{S0+2*i+1}, v{S0+2*i+1}')
    def fin(i):
        e(f'v_cvt_pk_bf16_f32 v{P+i}, v{S0+2*i}, v{S0+2*i+1}\nv_add_f32 v6, v6, v{S0+2*i}\nv_add_f32 v7, v7, v{S0+2*i+1}')
    for i in range(5): sm(i)
    for i in range(4): fin(i)
    for m in range(16, 32):
        kk, dt = (m - 16) >> 2, (m - 16) & 3
        e(f's_waitcnt lgkmcnt({min(7 if m < 18 else 5, 31 - m) if m != 17 else 6})')
        e(f'{MF} {v(O+16*dt,16)}, {v(FR+4*(m%8),4)}, {v(P+4*kk,4)}, {v(O+16*dt,16)}')
        if m >= 18 and m + 6 < 32: e(rd(0, m + 6))
        if m - 11 < 16: sm(m - 11)
        if m - 12 < 16: fin(m - 12)
    e('s_barrier\ns_branch at_fin0')

def merge(e, par, ks, ret):
    send, keep = (O + 32, O) if ks == 0 else (O, O + 32)
    wa = ((par ^ 1) * 32768, par * 32768 + 65536)
    def ad(off):
        return ('v14', off - 65536) if off >= 65536 else ('v13', off)
    for i in range(8):
        a, off = ad(wa[ks] + i * 1024)
        e(f'ds_write_b128 {a}, {v(send+4*i,4)} offset:{off}')
    e('s_waitcnt lgkmcnt(0)\ns_barrier\nv_xor_b32 v9, 0x800, v15\nds_read_b64 v[10:11], v9')
    for i in range(8):
        a, off = ad(wa[ks ^ 1] + i * 1024)
        e(f'ds_read_b128 {v(send+4*i,4)}, {a} offset:{off}')
    e('''s_waitcnt lgkmcnt(8)
    v_min_f32 v9, v8, v10
    v_sub_f32 v8, v9, v8
    v_sub_f32 v10, v9, v10
    v_exp_f32 v8, v8
    v_exp_f32 v10, v10
    s_nop 0
    v_mul_f32 v6, v6, v8
    v_fmac_f32 v6, v11, v10
    v_rcp_f32 v6, v6
    s_nop 0
    v_mul_f32 v8, v8, v6
    v_mul_f32 v10, v10, v6''')
    for i in range(32):
        e(f'v_mul_f32 v{keep+i}, v{keep+i}, v8')
    e('s_waitcnt lgkmcnt(0)')
    for i in range(32):
        e(f'v_fmac_f32 v{keep+i}, v{send+i}, v10')
    pack(e, P, keep, 32)
    for i in range(4):
        e(f'buffer_store_dwordx4 {v(P+4*i,4)}, v1, s[20:23], s52 offen offset:{i*1024}')
    e(f's_branch {ret}')

def rd(par, m):
    if m < 16:
        t, d = m & 1, m >> 1
        return f'ds_read_b128 {v(FR+4*(m%8),4)}, v2 offset:{(par^1)*32768 + (t*8+d)*1024}'
    kk, dt = (m - 16) >> 2, (m - 16) & 3
    return f'ds_read_b128 {v(FR+4*(m%8),4)}, v3 offset:{par*32768 + (dt*4+kk)*1024}'

def body(e, par):
    Sc, Sn = (S0, S1) if par == 0 else (S1, S0)
    e.lab(f'at_it{par}')
    e(f's_cmp_lg_u32 s54, s55\ns_cbranch_scc1 at_nq{par}')
    if par == 0:
        e('s_cmp_eq_u32 s54, 16\ns_cbranch_scc1 at_last')
    for i in range(8):
        e(f'ds_read_b128 {v(Q+4*i,4)}, v12 offset:{i*1024}')
    e(f'v_mov_b32 v8, v{NEGM}')
    for i in range(16):
        e(f'v_mov_b32 v{NEGM+i}, 0')
    e('s_waitcnt lgkmcnt(0)')
    e.lab(f'at_nq{par}')
    def mf(m):
        f = v(FR + 4 * (m % 8), 4)
        if m < 16:
            t, d = m & 1, m >> 1
            return f'{MF} {v(Sn+16*t,16)}, {f}, {v(Q+4*d,4)}, {v(NEGM,16) if d == 0 else v(Sn+16*t,16)}'
        kk, dt = (m - 16) >> 2, (m - 16) & 3
        return f'{MF} {v(O+16*dt,16)}, {f}, {v(P+4*kk,4)}, {v(O+16*dt,16)}'
    dm = kv_dma('K', par) + kv_dma('V', par ^ 1)
    mx = max_ops(Sn)
    sl = [[] for _ in range(32)]
    for i in range(32):
        sl[i * 25 // 32].append(f'v_exp_f32 v{Sc+i}, v{Sc+i}')
    for i in range(16):
        sl[(2 * i + 1) * 25 // 32 + 1].append(f'v_cvt_pk_bf16_f32 v{P+i}, v{Sc+2*i}, v{Sc+2*i+1}\nv_add_f32 v6, v6, v{Sc+2*i}\nv_add_f32 v7, v7, v{Sc+2*i+1}')
    for i in range(8):
        sl[2 * i].append(dm[i])
    for i, x in enumerate(mx):
        sl[22 + i * 10 // 16].append(x)
    for m in range(32):
        if m == 16:
            e(f's_cmp_eq_u32 s54, s56\ns_cbranch_scc1 at_mask{par}')
            e.lab(f'at_mret{par}')
        if m == 28:
            e('s_waitcnt lgkmcnt(0)\ns_barrier' if '6' in os.environ.get('EXP', '') else 's_waitcnt vmcnt(0) lgkmcnt(0)\ns_barrier')
            for k in range(4): e(rd(par ^ 1, k))
        if m < 28:
            e(f's_waitcnt lgkmcnt({min(AH, 32 - m) - 1})')
        e(mf(m))
        if m + AH < 32 and '3' not in os.environ.get('EXP', ''):
            e(rd(par, m + AH))
        if m in (29, 30):
            e(rd(par ^ 1, m - 25))
        for x in sl[m]:
            X = os.environ.get('EXP', '')
            if '1' in X and 'buffer_load' in x: continue
            if '2' in X and 'v_exp' in x: continue
            if '4' in X and 'v_cvt' in x: continue
            e(x)
    e(f'''s_cmp_eq_u32 s54, s55
    s_cbranch_scc1 at_fin{par}''')
    e(f'''v_cmp_lt_f32 vcc, s50, v5
    s_add_u32 s54, s54, 1
    s_cmp_lg_u64 vcc, 0
    s_cbranch_scc1 at_rs{par}''')
    if par == 1:
        e('s_branch at_it0')

def tails(e, par):
    Sn = S1 if par == 0 else S0
    rescale(e, Sn, f'at_rs{par}', f'at_it{par^1}')
    rescale(e, Sn, f'at_fs{par}', f'at_it{par^1}', True)
    e.lab(f'at_mask{par}')
    e('s_mov_b32 s56, 15\nv_mov_b32 v9, 0xf149f2ca\ns_nop 7\ns_nop 3')
    for i in range(0, 32, 4):
        for k in range(4):
            r = i + k
            c = (r >> 4) * 32 + 8 * ((r & 15) >> 2) + (r & 3)
            e(f'v_cmp_gt_i32 s[{60+2*k}:{61+2*k}], {c}, v4')
        e('s_nop 0')
        for k in range(4):
            e(f'v_cndmask_b32 v{Sn+i+k}, v{Sn+i+k}, v9, s[{60+2*k}:{61+2*k}]')
    e(f's_branch at_mret{par}')
    e.lab(f'at_fin{par}')
    e(f'''v_add_f32 v6, v6, v7
    v_mov_b32 v7, v6
    s_nop 1
    v_permlane32_swap_b32 v7, v6
    s_nop 1
    v_add_f32 v6, v6, v7
    v_mov_b32 v9, v6
    s_nop 1
    ds_write_b64 v15, v[8:9]
    s_nop 3
    s_cmp_eq_u32 s42, 0
    s_cbranch_scc0 at_mg1_{par}''')
    merge(e, par, 0, f'at_mgd{par}')
    e.lab(f'at_mg1_{par}')
    merge(e, par, 1, f'at_mgd{par}')
    e.lab(f'at_mgd{par}')
    e('s_cmp_eq_u32 s54, 16\ns_cbranch_scc1 at_done\ns_barrier\ns_mov_b32 s55, 16\ns_mov_b32 s52, s53')
    e('s_add_u32 s54, s54, 1\nv_mov_b32 v6, 0\nv_mov_b32 v7, 0')
    for i in range(64):
        e(f'v_mov_b32 v{O+i}, 0')
    e(f's_branch at_fs{par}')

def attn_kernel(e):
    g = G(8, 2, 2, 8, 2, 2, 4, 16, 8192, [(0, 0), (1, 0)], vb=65536)
    kernel_begin(e, 'attn_kernel')
    tick(e, 0)
    e(f'''s_load_dwordx2 s[8:9], s[0:1], {KA['wq']}
    s_load_dwordx2 s[6:7], s[0:1], {KA['ws']}
    s_cmp_ge_u32 s2, 256
    s_cbranch_scc1 at_end
    s_and_b32 s33, s2, 7
    s_lshl_b32 s33, s33, 2
    s_bfe_u32 s34, s2, 0x20003
    s_add_u32 s33, s33, s34
    s_lshr_b32 s34, s2, 5
    s_sub_u32 s35, 15, s34''')
    g.setup(e, f's_mul_i32 s43, s42, {g.PAN}')
    e('s_waitcnt lgkmcnt(0)')
    srd(e, 16, 8, 0, 4 * MB)
    srd(e, 12, 6, WS_H1, 2 * MB)
    e('''s_cmp_eq_u32 s42, 0
    s_cselect_b32 s46, s35, s34
    s_lshl_b32 s46, s46, 2
    s_add_u32 s46, s46, s41
    s_lshl_b32 s46, s46, 15
    s_lshl_b32 s47, s33, 8
    s_lshr_b32 s36, s40, 2
    s_lshl_b32 s36, s36, 7
    s_add_u32 s47, s47, s36
    s_and_b32 s36, s40, 3
    s_lshl_b32 s36, s36, 16
    s_add_u32 s47, s47, s36''')
    g.prologue(e, ROT16)
    srd(e, 24, 6, WS_K, 16 * MB)
    srd(e, 28, 6, WS_V, 16 * MB)
    srd(e, 20, 6, WS_CTX, 16 * MB)
    e('''s_lshl_b32 s36, s40, 12
    s_add_u32 s36, s36, 0x18000
    v_add_u32 v110, s36, v1
    s_and_b32 s41, s40, 3
    s_lshr_b32 s42, s40, 2
    s_lshl_b32 s57, s40, 12
    s_lshl_b32 s49, s33, 19
    s_add_u32 s49, s49, s57
    s_mov_b32 s58, s49
    s_mov_b32 s59, s49
    s_add_u32 s48, s35, 1
    s_lshl_b32 s48, s48, 15
    s_add_u32 s48, s48, s49
    s_lshl_b32 s36, s41, 18
    s_lshl_b32 s37, s33, 13
    s_add_u32 s36, s36, s37
    s_lshl_b32 s37, s42, 12
    s_add_u32 s36, s36, s37
    s_lshl_b32 s52, s35, 20
    s_add_u32 s52, s52, s36
    s_lshl_b32 s53, s34, 20
    s_add_u32 s53, s53, s36
    s_mov_b32 s54, 0
    s_mov_b32 s55, s35
    s_sub_u32 s56, s35, 1
    s_mov_b32 s50, 0x41f00000''')
    for i in range(64):
        e(f'v_mov_b32 v{O+i}, 0')
    g.loop(e, 'WA', {12: kv_dma('K', 0) + kv_dma('K', 1), 13: kv_dma('V', 0)})
    e('s_barrier')
    for i in range(64):
        e(f'v_mul_f32 v{g.ACC+i}, 0x3e0293ee, v{g.ACC+i}')
    pack(e, S1, g.ACC, 64)
    for i in range(8):
        e(f'ds_write_b128 v110, {v(S1+4*i,4)} offset:{(i>>2)*32768+(i&3)*1024}')
    e('''v_lshrrev_b32 v5, 4, v1
    v_lshrrev_b32 v4, 5, v5
    v_and_b32 v5, 31, v5
    v_lshlrev_b32 v4, 2, v4
    v_sub_u32 v4, v5, v4
    s_lshl_b32 s36, s41, 5
    s_lshl_b32 s37, s42, 6
    s_sub_u32 s36, s36, s37
    v_add_u32 v4, s36, v4
    v_lshlrev_b32 v15, 3, v0
    v_add_u32 v15, 0x20000, v15
    s_lshl_b32 s36, s42, 14
    v_add_u32 v2, s36, v1
    v_add_u32 v3, 0x10000, v2
    s_lshl_b32 s36, s41, 13
    v_add_u32 v13, s36, v1
    v_add_u32 v14, 0x10000, v13
    v_add_u32 v12, 0x20000, v13
    s_waitcnt vmcnt(8) lgkmcnt(0)
    s_barrier''')
    for i in range(8):
        e(f'ds_read_b128 {v(Q+4*i,4)}, v14 offset:{32768+i*1024}')
    for i in range(16):
        e(f'v_mov_b32 v{NEGM+i}, 0')
    e('v_mov_b32 v6, 0\nv_mov_b32 v7, 0\ns_waitcnt lgkmcnt(0)')
    for h in range(2):
        for m in range(8):
            e(f'ds_read_b128 {v(FR+4*m,4)}, v2 offset:{((m&1)*8+h*4+(m>>1))*1024}')
        for m in range(8):
            t, d = m & 1, h * 4 + (m >> 1)
            e(f's_waitcnt lgkmcnt({7-m})\n{MF} {v(S0+16*t,16)}, {v(FR+4*m,4)}, {v(Q+4*d,4)}, {"0" if d == 0 else v(S0+16*t,16)}')
    e('s_waitcnt vmcnt(0)\ns_barrier')
    tick(e, 3)
    for k in range(AH): e(rd(0, k))
    e('s_nop 7')
    for x in max_ops(S0): e(x)
    e('s_branch at_fs1')
    body(e, 0)
    body(e, 1)
    tails(e, 0)
    tails(e, 1)
    last_body(e)
    e.lab('at_done')
    e('s_waitcnt vmcnt(0)')
    tick(e, 4)
    tick_store(e, 5, 2)
    e.lab('at_end')
    e('s_endpgm')
    return kernel_desc('attn_kernel', 240), 160 * 1024
```

```python
MB = 1 << 20
WS_MOD = 0
WS_CKV = 1 * MB
WS_H1 = 3 * MB
WS_H2 = 5 * MB
WS_X1 = 7 * MB
WS_HH = 9 * MB
WS_K = 16 * MB
WS_V = 32 * MB
WS_CTX = 48 * MB
WS_PART = 64 * MB
KA = dict(x=0, ckv=8, wq=16, wuk=24, wuv=32, wo=40, bx=48, wg=56, wu=64, wd=72, c=80, wmod=88, out=96, dbg=104, ws=112)

class E:
    def __init__(self):
        self.l = []
        self.n = 0
    def __call__(self, s):
        for x in s.strip().split('\n'):
            self.l.append('    ' + x.strip())
    def lab(self, s):
        self.l.append(s + ':')
    def uniq(self, p):
        self.n += 1
        return f'{p}_{self.n}'
    def text(self):
        return '\n'.join(self.l) + '\n'

def v(a, n=1):
    return f'v{a}' if n == 1 else f'v[{a}:{a+n-1}]'
def s(a, n=1):
    return f's{a}' if n == 1 else f's[{a}:{a+n-1}]'

def srd(e, d, base, off, size):
    if off:
        e(f's_add_u32 s{d}, s{base}, {off}\ns_addc_u32 s{d+1}, s{base+1}, 0')
    else:
        e(f's_mov_b32 s{d}, s{base}\ns_mov_b32 s{d+1}, s{base+1}')
    e(f's_mov_b32 s{d+2}, {size}\ns_mov_b32 s{d+3}, 0x00020000')

def kernel_begin(e, name):
    e.l.append(f'.text\n.globl {name}\n.p2align 8\n.type {name},@function\n{name}:')

def kernel_desc(name, nv, ns=102):
    acc = (nv + 3) // 4 * 4
    return f'''.section .rodata,"a"
.p2align 6
.amdhsa_kernel {name}
  .amdhsa_next_free_vgpr {nv}
  .amdhsa_next_free_sgpr {ns}
  .amdhsa_accum_offset {acc}
  .amdhsa_group_segment_fixed_size 0
  .amdhsa_kernarg_size 120
  .amdhsa_user_sgpr_count 2
  .amdhsa_user_sgpr_kernarg_segment_ptr 1
  .amdhsa_system_sgpr_workgroup_id_x 1
.end_amdhsa_kernel
'''

def unpack(e, lo, hi, src):
    e(f'v_and_b32 v{hi}, 0xffff0000, v{src}\nv_lshlrev_b32 v{lo}, 16, v{src}')

def layernorm_rows(e, xs, nw, lds_off, vt, vtid, sc, sh):
    a, c, b, d, R = vt, vt + 1, vt + 2, vt + 3, vt + 4
    e(f'v_add_f32 v{a}, v{xs[0]}, v{xs[1]}\nv_mul_f32 v{c}, v{xs[0]}, v{xs[0]}\nv_fmac_f32 v{c}, v{xs[1]}, v{xs[1]}')
    for x in xs[2:]:
        e(f'v_add_f32 v{a}, v{a}, v{x}\nv_fmac_f32 v{c}, v{x}, v{x}')
    e(f'''s_nop 1
    v_add_f32_dpp v{a}, v{a}, v{a} row_ror:8 row_mask:0xf bank_mask:0xf
    v_add_f32_dpp v{c}, v{c}, v{c} row_ror:8 row_mask:0xf bank_mask:0xf''')
    for op in ('v_permlane16_swap_b32', 'v_permlane32_swap_b32'):
        e(f'''v_mov_b32 v{b}, v{a}
        v_mov_b32 v{d}, v{c}
        s_nop 1
        {op} v{b}, v{a}
        {op} v{d}, v{c}
        s_nop 1
        v_add_f32 v{a}, v{a}, v{b}
        v_add_f32 v{c}, v{c}, v{d}''')
    e(f'''v_and_b32 v{b}, 7, v{vtid}
    v_mul_u32_u24 v{b}, {nw*8}, v{b}
    v_lshrrev_b32 v{d}, 6, v{vtid}
    v_lshl_add_u32 v{d}, v{d}, 3, v{b}
    ds_write_b64 v{d}, v[{a}:{c}] offset:{lds_off}
    s_waitcnt lgkmcnt(0)
    s_barrier''')
    for i in range(nw // 2):
        e(f'ds_read_b128 v[{R+4*i}:{R+4*i+3}], v{b} offset:{lds_off+16*i}')
    e(f's_waitcnt lgkmcnt(0)\nv_add_f32 v{a}, v{R}, v{R+2}\nv_add_f32 v{c}, v{R+1}, v{R+3}')
    for i in range(2, nw):
        e(f'v_add_f32 v{a}, v{a}, v{R+2*i}\nv_add_f32 v{c}, v{c}, v{R+2*i+1}')
    e(f'''v_mul_f32 v{a}, 0x3b000000, v{a}
    v_mul_f32 v{c}, 0x3b000000, v{c}
    v_fma_f32 v{c}, -v{a}, v{a}, v{c}
    v_max_f32 v{c}, 0, v{c}
    v_add_f32 v{c}, 0x3727c5ac, v{c}
    v_rsq_f32 v{c}, v{c}''')
    for x, p, q in zip(xs, sc, sh):
        e(f'v_sub_f32 v{x}, v{x}, v{a}\nv_mul_f32 v{p}, v{p}, v{c}\nv_fma_f32 v{x}, v{x}, v{p}, v{q}')

import os
PF = int(os.environ.get('PF', '1'))
TICK = bool(os.environ.get('TICK'))
def tick(e, i):
    if TICK:
        e(f's_memtime s[{70+4*i}:{71+4*i}]\ns_memrealtime s[{72+4*i}:{73+4*i}]\ns_waitcnt lgkmcnt(0)')
KIDX = {}
def tick_store(e, n, k):
    if not TICK: return
    l = e.uniq('tk')
    e(f's_cmp_lg_u32 s40, 0\ns_cbranch_scc1 {l}\ns_lshl_b32 s3, s2, 6')
    srd(e, 96, 6, 200 * MB + k * 65536, 65536)
    e('v_mov_b32 v2, 0')
    for i in range(n):
        e(f'v_mov_b32 v4, s{70+4*i}\nv_mov_b32 v5, s{72+4*i}\nbuffer_store_dwordx2 v[4:5], v2, s[96:99], s3 offen offset:{8*i}\ns_nop 1')
    e('s_waitcnt vmcnt(0)')
    e.lab(l)
```

```python
from common import *

def interleave(main, extra):
    out = []
    n, m = len(main), len(extra)
    for i, x in enumerate(main):
        out.append(x)
        out += [extra[k] for k in range(m) if k * n // m == i]
    return out

class G:
    def __init__(s, NW, WC, TR, RT, KS, NP, NS, nst, ld, wtiles, base=0, vb=0, U=1):
        s.__dict__.update(locals())
        s.BK = KS * 16
        s.ACT = RT * KS * 1024
        s.PAN = s.BK * 128
        s.STG = s.ACT + NP * s.PAN
        s.na = RT * KS // NW
        s.nwd = NP * (s.BK // 8) // NW
        s.L = s.na + s.nwd
        s.TC = len(wtiles)
        s.lds = base + NS * s.STG
        s.F = 12
        s.F1 = (TR + s.TC) * 4
        s.FS = s.F1 * U
        s.ACC = s.F + 2 * s.FS
        s.NV = s.ACC + TR * s.TC * 16
    def acc(s, tr, tc):
        return s.ACC + (tr * s.TC + tc) * 16
    def setup(s, e, wpan):
        lg = {1: 0, 2: 1, 4: 2, 8: 3}
        e(f'''v_and_b32 v1, 63, v0
        v_lshrrev_b32 v2, 6, v0
        s_nop 0
        v_readfirstlane_b32 s40, v2
        v_lshrrev_b32 v8, 3, v1
        v_and_b32 v9, 7, v1
        v_bfe_u32 v10, v1, 4, 1
        v_lshrrev_b32 v11, 2, v9
        v_xor_b32 v10, v10, v11
        v_and_b32 v9, 3, v9
        v_mul_u32_u24 v8, {s.ld}, v8
        v_lshl_add_u32 v8, v10, 6, v8
        v_lshl_add_u32 v8, v9, 4, v8
        s_lshr_b32 s41, s40, {lg[s.WC]}
        s_and_b32 s42, s40, {s.WC - 1}
        v_lshrrev_b32 v4, 5, v1
        v_lshlrev_b32 v4, 9, v4
        v_bfe_u32 v5, v1, 2, 2
        v_lshl_add_u32 v4, v5, 7, v4
        v_bfe_u32 v5, v1, 4, 1
        v_lshl_add_u32 v4, v5, 5, v4
        v_and_b32 v5, 3, v1
        v_lshl_add_u32 v4, v5, 3, v4
        v_bfe_u32 v5, v1, 3, 1
        v_lshl_add_u32 v4, v5, 6, v4
        v_lshlrev_b32 v1, 4, v1
        s_mul_i32 s43, s41, {s.TR * s.KS * 1024}
        s_add_u32 s43, s43, {s.vb}
        v_add_u32 v2, s43, v1
        v_add_u32 v3, 0x10000, v2
        v_add_u32 v4, {s.vb}, v4''')
        if wpan:
            e(wpan + '\nv_add_u32 v4, s43, v4')
        e('v_xor_b32 v6, 64, v4\nv_add_u32 v5, 0x10000, v4\nv_add_u32 v7, 0x10000, v6')
        for i in range(1, s.nwd):
            e(f'v_add_u32 v{8+i}, {i * (8 * s.ld - 1024)}, v8')
        e(f's_mul_i32 s44, s40, {s.na * 1024}\ns_mul_i32 s45, s40, {s.nwd * 1024}\ns_add_u32 s45, s45, {s.ACT + s.vb}\ns_add_u32 s44, s44, {s.vb}')
    def dma(s, st):
        b = s.base + (st % s.NS) * s.STG
        o = []
        for i in range(s.na):
            pre = f's_add_u32 m0, s44, {b}\ns_nop 0\n' if i == 0 else ''
            post = f'\ns_add_u32 s46, s46, {s.KS * 1024}\ns_cmp_eq_u32 s46, s60\ns_cselect_b32 s46, s62, s46' if i == s.na - 1 else ''
            o.append(pre + f'buffer_load_dwordx4 v1, s[12:15], s46 offen offset:{i*1024} lds' + post)
        for i in range(s.nwd):
            pre = f's_add_u32 m0, s45, {b}\ns_nop 0\n' if i == 0 else ''
            post = f'\ns_add_u32 s47, s47, {s.BK * s.ld}\ns_cmp_eq_u32 s47, s61\ns_cselect_b32 s47, s63, s47' if i == s.nwd - 1 else ''
            o.append(pre + f'buffer_load_dwordx4 v{8+i}, s[16:19], s47 offen offset:{i*1024} lds' + post)
        return o
    def rd(s, op, d, n, a, off):
        if off >= 65536:
            a += 1; off -= 65536
        return f'{op} {v(d, n)}, v{a} offset:{off}'
    def reads(s, st, kg, fs):
        return sum([s.reads1(st, kg * s.U + u, s.F + fs * s.FS + u * s.F1) for u in range(s.U)], [])
    def reads1(s, st, ks, f):
        b = s.base + (st % s.NS) * s.STG
        o = []
        for tc, (j, po) in enumerate(s.wtiles):
            for h in range(2):
                o.append(s.rd('ds_read_b64_tr_b16', f + (s.TR + tc) * 4 + 2 * h, 2, 4 + 2 * j, b + s.ACT + po + ks * 2048 + h * 1024))
            if tc == 0:
                o.append(s.rd('ds_read_b128', f, 4, 2, b + ks * 1024))
        for tr in range(1, s.TR):
            o.append(s.rd('ds_read_b128', f + tr * 4, 4, 2, b + (tr * s.KS + ks) * 1024))
        return o
    def mfmas(s, fs, mode, first=False):
        return sum([s.mfmas1(s.F + fs * s.FS + u * s.F1, mode, first and u == 0) for u in range(s.U)], [])
    def mfmas1(s, f, mode, first):
        o = []
        for tr in range(s.TR):
            for tc in range(s.TC):
                a, w = v(f + tr * 4, 4), v(f + (s.TR + tc) * 4, 4)
                if mode == 'AW':
                    a, w = w, a
                c = v(s.acc(tr, tc), 16)
                o.append(f'v_mfma_f32_32x32x16_bf16 {c}, {w}, {a}, {"0" if first else c}')
        return o
    def prologue(s, e, rot):
        e(rot + f'''
        s_mov_b32 s62, s46
        s_mov_b32 s63, s47
        s_add_u32 s60, s46, {s.nst * s.KS * 1024}
        s_add_u32 s61, s47, {s.nst * s.BK * s.ld}
        s_mul_i32 s65, s64, {s.KS * 1024}
        s_add_u32 s46, s46, s65
        s_mul_i32 s65, s64, {s.BK * s.ld}
        s_add_u32 s47, s47, s65''')
        for st in range(s.NS):
            for x in s.dma(st):
                e(x)
    def loop(s, e, mode, extra={}):
        xc = 0
        R = len(s.reads(0, 0, 0))
        e(f's_waitcnt vmcnt({(s.NS - 1) * s.L})\ns_barrier')
        tick(e, 1)
        for x in s.reads(0, 0, 0): e(x)
        fs = 0
        for st in range(s.nst):
            for ks in range(s.KS // s.U - 1):
                for x in s.reads(st, ks + 1, fs ^ 1): e(x)
                e(f's_waitcnt lgkmcnt({R})')
                for x in s.mfmas(fs, mode, st == 0 and ks == 0): e(x)
                fs ^= 1
            if st + 1 < s.nst:
                pend = min(s.NS - 2, s.nst - st - 2)
                e(f's_waitcnt vmcnt({pend * s.L + xc}) lgkmcnt(0)\ns_barrier')
                for x in s.reads(st + 1, 0, fs ^ 1): e(x)
            else:
                e('s_waitcnt lgkmcnt(0)')
            d = s.dma(st + s.NS) if st + s.NS < s.nst else []
            d = d + extra.get(st, []); xc += len(extra.get(st, []))
            for x in interleave(s.mfmas(fs, mode, st == 0 and s.KS == s.U), d): e(x)
            fs ^= 1
        e('s_nop 7\ns_nop 7')
        tick(e, 2)

ROT16 = 's_mov_b32 s64, 0'
def ROT2(h):
    return f's_lshr_b32 s64, s2, 3\ns_lshr_b32 s65, s2, 5\ns_add_u32 s64, s64, s65\ns_and_b32 s64, s64, 1\ns_mul_i32 s64, s64, {h}'
def pack(e, d, a, n=16):
    for i in range(n // 2):
        e(f'v_cvt_pk_bf16_f32 v{d+i}, v{a+2*i}, v{a+2*i+1}')

def kv_kernel(e):
    g = G(8, 4, 4, 8, 2, 4, 4, 16, 8192, [(0, 0), (1, 0)], base=1024)
    kernel_begin(e, 'kv_kernel')
    tick(e, 0)
    e(f'''s_load_dwordx2 s[4:5], s[0:1], {KA['x']}
    s_load_dwordx4 s[8:11], s[0:1], {KA['wuk']}
    s_load_dwordx2 s[6:7], s[0:1], {KA['ws']}
    s_cmp_ge_u32 s2, 256
    s_cbranch_scc1 kv_end
    s_and_b32 s33, s2, 7
    s_lshl_b32 s33, s33, 1
    s_bfe_u32 s34, s2, 0x10003
    s_add_u32 s33, s33, s34
    s_and_b32 s34, s2, 16
    s_add_u32 s33, s33, s34
    s_lshr_b32 s34, s2, 5''')
    g.setup(e, f's_mul_i32 s43, s42, {g.PAN}')
    e('''s_waitcnt lgkmcnt(0)
    s_cmp_ge_u32 s33, 16
    s_cselect_b32 s8, s10, s8
    s_cselect_b32 s9, s11, s9
    s_and_b32 s35, s33, 15''')
    srd(e, 12, 6, WS_CKV, 2 * MB)
    srd(e, 16, 8, 0, 4 * MB)
    srd(e, 20, 4, 0, 2 * MB)
    srd(e, 24, 6, WS_MOD, 3072 * 4)
    srd(e, 28, 6, WS_H1, 2 * MB)
    A = g.NV
    e(f'''s_lshl_b32 s46, s34, 3
    s_add_u32 s46, s46, s40
    s_lshl_b32 s46, s46, 15
    s_lshr_b32 s47, s40, 1
    s_lshl_b32 s47, s47, 7
    s_and_b32 s36, s40, 1
    s_lshl_b32 s36, s36, 17
    s_add_u32 s47, s47, s36
    s_lshl_b32 s36, s35, 9
    s_add_u32 s47, s47, s36''')
    g.prologue(e, ROT16)
    e(f'''v_and_b32 v{A}, 7, v0
    v_bfe_u32 v{A+1}, v0, 3, 1
    v_lshrrev_b32 v{A+2}, 4, v0
    v_lshlrev_b32 v{A+4}, 10, v{A}
    v_lshl_add_u32 v{A+4}, v{A+1}, 3, v{A+4}
    v_lshl_add_u32 v{A+4}, v{A+2}, 5, v{A+4}
    s_lshl_b32 s38, s2, 13
    v_lshlrev_b32 v{A+5}, 4, v{A+1}
    v_lshl_add_u32 v{A+5}, v{A+2}, 6, v{A+5}
    v_lshlrev_b32 v{A+3}, 4, v{A}
    v_lshl_add_u32 v{A+3}, v{A+1}, 9, v{A+3}
    v_lshl_add_u32 v{A+3}, v{A+2}, 10, v{A+3}
    s_lshr_b32 s39, s2, 2
    s_lshl_b32 s39, s39, 15
    s_and_b32 s37, s2, 3
    s_lshl_b32 s37, s37, 7
    s_add_u32 s39, s39, s37
    s_lshl_b32 s36, s35, 1
    s_lshr_b32 s37, s42, 1
    s_add_u32 s36, s36, s37
    s_lshl_b32 s36, s36, 19
    s_lshl_b32 s37, s34, 16
    s_add_u32 s36, s36, s37
    s_lshl_b32 s37, s41, 15
    s_add_u32 s36, s36, s37
    s_and_b32 s37, s42, 1
    s_cmp_ge_u32 s33, 16
    s_cbranch_scc1 kv_v
    s_lshl_b32 s37, s37, 12
    s_add_u32 s36, s36, s37''')
    X = {12: [f'buffer_load_dwordx2 v[{A+8}:{A+9}], v{A+4}, s[20:23], s38 offen', f'buffer_load_dwordx2 v[{A+10}:{A+11}], v{A+4}, s[20:23], s38 offen offset:16'] +
         [f'buffer_load_dwordx4 {v(A+16+4*i,4)}, v{A+5}, s[24:27], 0 offen offset:{o}' for i, o in enumerate((0, 32, 2048, 2080))]}
    srd(e, 52, 6, WS_K, 16 * MB)
    g.loop(e, 'WA', X)
    e('s_waitcnt vmcnt(0)')
    for tr in range(4):
        for tc in range(2):
            d = g.F + ((tr * 2 + tc) % 4) * 8
            pack(e, d, g.acc(tr, tc))
            e(f'buffer_store_dwordx4 {v(d,4)}, v1, s[52:55], s36 offen offset:{tc*2048}\nbuffer_store_dwordx4 {v(d+4,4)}, v1, s[52:55], s36 offen offset:{tc*2048+1024}')
        e('s_add_u32 s36, s36, 8192')
    e('s_branch kv_ln')
    e.lab('kv_v')
    e('s_lshl_b32 s37, s37, 13\ns_add_u32 s36, s36, s37')
    srd(e, 52, 6, WS_V, 16 * MB)
    g.loop(e, 'AW', X)
    e('s_waitcnt vmcnt(0)')
    i = 0
    for t2 in range(2):
        for tc in range(2):
            for t1 in range(2):
                d = g.F + (i % 4) * 8; i += 1
                pack(e, d, g.acc(t2 * 2 + t1, tc))
                e(f'buffer_store_dwordx4 {v(d,4)}, v1, s[52:55], s36 offen offset:{t1*2048}\nbuffer_store_dwordx4 {v(d+4,4)}, v1, s[52:55], s36 offen offset:{t1*2048+1024}')
            e(f's_add_u32 s36, s36, {4096 if tc == 0 else 16384 - 4096}')
    e.lab('kv_ln')
    for i in range(4):
        unpack(e, A + 32 + 2 * i, A + 33 + 2 * i, A + 8 + i)
    layernorm_rows(e, [A + 32 + i for i in range(8)], 8, 0, A + 40, 0, [A + 24 + i for i in range(8)], [A + 16 + i for i in range(8)])
    pack(e, A + 8, A + 32, 8)
    e(f'buffer_store_dwordx4 v[{A+8}:{A+11}], v{A+3}, s[28:31], s39 offen')
    if TICK: e('s_waitcnt vmcnt(0)')
    tick(e, 3)
    tick_store(e, 4, 1)
    e.lab('kv_end')
    e('s_endpgm')
    return kernel_desc('kv_kernel', A + 60), g.lds

def op_kernel(e):
    g = G(8, 2, 1, 4, 4, 2, 4, 16, 1024, [(0, 0), (1, 0)], U=2)
    kernel_begin(e, 'op_kernel')
    tick(e, 0)
    e(f'''s_load_dwordx2 s[8:9], s[0:1], {KA['wo']}
    s_load_dwordx2 s[6:7], s[0:1], {KA['ws']}
    s_cmp_ge_u32 s2, 256
    s_cbranch_scc1 op_end
    s_bfe_u32 s33, s2, 0x20001
    s_and_b32 s34, s2, 1
    s_lshl_b32 s34, s34, 3
    s_lshr_b32 s35, s2, 5
    s_add_u32 s34, s34, s35
    s_bfe_u32 s35, s2, 0x20003''')
    g.setup(e, f's_mul_i32 s43, s42, {g.PAN}')
    e('s_waitcnt lgkmcnt(0)')
    srd(e, 12, 6, WS_CTX, 16 * MB)
    srd(e, 16, 8, 0, 4 * MB)
    srd(e, 20, 6, WS_PART, 8 * MB)
    e('''s_lshl_b32 s46, s34, 2
    s_add_u32 s46, s46, s41
    s_lshl_b32 s46, s46, 18
    s_lshl_b32 s36, s33, 16
    s_add_u32 s46, s46, s36
    s_lshl_b32 s36, s42, 11
    s_add_u32 s46, s46, s36
    s_lshr_b32 s47, s40, 2
    s_lshl_b32 s47, s47, 7
    s_and_b32 s36, s40, 3
    s_lshl_b32 s36, s36, 14
    s_add_u32 s47, s47, s36
    s_lshl_b32 s36, s35, 8
    s_add_u32 s47, s47, s36
    s_lshl_b32 s36, s33, 20
    s_add_u32 s47, s47, s36''')
    g.prologue(e, ROT2(8))
    e('''s_lshl_b32 s36, s33, 21
    s_lshl_b32 s37, s34, 17
    s_add_u32 s36, s36, s37
    s_lshl_b32 s37, s41, 15
    s_add_u32 s36, s36, s37
    s_lshl_b32 s37, s35, 13
    s_add_u32 s36, s36, s37
    s_lshl_b32 s37, s42, 12
    s_add_u32 s36, s36, s37''')
    g.loop(e, 'WA')
    for tr in range(1):
        d = g.F + tr * 16
        pack(e, d, g.acc(tr, 0), 32)
        for q in range(4):
            e(f'buffer_store_dwordx4 {v(d+4*q,4)}, v1, s[20:23], s36 offen offset:{q*1024}')
        e('s_add_u32 s36, s36, 32768')
    if TICK: e('s_waitcnt vmcnt(0)')
    tick(e, 3)
    tick_store(e, 4, 3)
    e.lab('op_end')
    e('s_endpgm')
    return kernel_desc('op_kernel', g.NV), g.lds

def gu_kernel(e):
    g = G(8, 2, 2, 8, 2, 2, 5, 16, 3584, [(0, 0), (0, 4096)])
    kernel_begin(e, 'gu_kernel')
    tick(e, 0)
    e(f'''s_load_dwordx4 s[8:11], s[0:1], {KA['wg']}
    s_load_dwordx2 s[6:7], s[0:1], {KA['ws']}
    s_cmp_ge_u32 s2, 224
    s_cbranch_scc1 gu_end
    s_and_b32 s34, s2, 7
    s_lshr_b32 s35, s2, 3''')
    g.setup(e, None)
    e('''s_lshl_b32 s43, s42, 6
    v_xor_b32 v4, s43, v4
    v_xor_b32 v5, s43, v5
    s_waitcnt lgkmcnt(0)
    s_cmp_ge_u32 s40, 4
    s_cselect_b32 s8, s10, s8
    s_cselect_b32 s9, s11, s9''')
    srd(e, 12, 6, WS_H2, 2 * MB)
    srd(e, 16, 8, 0, 512 * 3584)
    srd(e, 20, 6, WS_HH, 7 * MB)
    e(f'''s_lshl_b32 s46, s34, 3
    s_add_u32 s46, s46, s40
    s_lshl_b32 s46, s46, 15
    s_and_b32 s47, s40, 3
    s_mul_i32 s47, s47, {8*3584}
    s_lshl_b32 s36, s35, 7
    s_add_u32 s47, s47, s36''')
    g.prologue(e, ROT16)
    e(f'''s_lshl_b32 s36, s34, 3
    s_lshl_b32 s37, s41, 1
    s_add_u32 s36, s36, s37
    s_mul_i32 s36, s36, {112*1024}
    s_lshl_b32 s37, s35, 12
    s_add_u32 s36, s36, s37
    s_lshl_b32 s37, s42, 11
    s_add_u32 s36, s36, s37''')
    g.loop(e, 'WA')
    for tr in range(2):
        a, b = g.acc(tr, 0), g.acc(tr, 1)
        for i in range(16):
            e(f'v_mul_f32 v{a+i}, v{a+i}, v{b+i}')
        d = g.F + tr * 8
        pack(e, d, a)
        e(f'buffer_store_dwordx4 {v(d,4)}, v1, s[20:23], s36 offen\nbuffer_store_dwordx4 {v(d+4,4)}, v1, s[20:23], s36 offen offset:1024\ns_add_u32 s36, s36, {112*1024}')
    if TICK: e('s_waitcnt vmcnt(0)')
    tick(e, 3)
    tick_store(e, 4, 5)
    e.lab('gu_end')
    e('s_endpgm')
    return kernel_desc('gu_kernel', g.NV), g.lds

def dn_kernel(e):
    g = G(4, 2, 1, 2, 4, 1, 7, 28, 1024, [(0, 0)], U=4)
    kernel_begin(e, 'dn_kernel')
    tick(e, 0)
    e(f'''s_load_dwordx2 s[8:9], s[0:1], {KA['wd']}
    s_load_dwordx2 s[6:7], s[0:1], {KA['ws']}
    s_load_dwordx2 s[4:5], s[0:1], {KA['out']}
    s_cmp_ge_u32 s2, 256
    s_cbranch_scc1 dn_end
    s_and_b32 s34, s2, 7
    s_lshl_b32 s34, s34, 2
    s_bfe_u32 s35, s2, 0x20003
    s_add_u32 s34, s34, s35
    s_lshr_b32 s35, s2, 5''')
    g.setup(e, None)
    e('''s_lshl_b32 s43, s42, 6
    v_xor_b32 v4, s43, v4
    v_xor_b32 v5, s43, v5
    s_waitcnt lgkmcnt(0)''')
    srd(e, 12, 6, WS_HH, 7 * MB)
    srd(e, 16, 8, 0, 1792 * 1024)
    srd(e, 20, 4, 0, 2 * MB)
    srd(e, 24, 6, WS_X1, 2 * MB)
    srd(e, 28, 6, WS_MOD, 3072 * 4)
    X = g.NV
    e(f'''s_lshl_b32 s36, s34, 1
    s_add_u32 s36, s36, s41
    s_lshl_b32 s37, s35, 1
    s_add_u32 s37, s37, s42
    s_lshl_b32 s38, s36, 15
    s_lshl_b32 s39, s37, 11
    s_add_u32 s39, s38, s39
    buffer_load_dwordx4 v[{X}:{X+3}], v1, s[24:27], s39 offen
    buffer_load_dwordx4 v[{X+4}:{X+7}], v1, s[24:27], s39 offen offset:1024
    v_lshrrev_b32 v10, 9, v1
    v_lshlrev_b32 v10, 4, v10
    s_lshl_b32 s39, s37, 7
    s_add_u32 s39, s39, {5*2048}''')
    for q in range(4):
        e(f'buffer_load_dwordx4 {v(X+8+4*q,4)}, v10, s[28:31], s39 offen offset:{32*q}')
    e(f'''v_and_b32 v11, 0x1f0, v1
    v_lshl_add_u32 v10, v11, 6, v10
    s_lshl_b32 s37, s37, 6
    s_add_u32 s38, s38, s37
    s_mul_i32 s46, s36, {112*1024}
    s_lshl_b32 s37, s42, 11
    s_add_u32 s46, s46, s37
    s_lshl_b32 s47, s40, 14
    s_lshl_b32 s37, s35, 7
    s_add_u32 s47, s47, s37''')
    g.prologue(e, ROT2(14))
    g.loop(e, 'WA')
    a = g.acc(0, 0)
    F = g.F
    for i in range(8):
        unpack(e, F + 2 * i, F + 2 * i + 1, X + i)
    for i in range(16):
        e(f'v_fmac_f32 v{F+i}, v{a+i}, v{X+8+i}')
    pack(e, X, F)
    e('s_nop 1')
    for t in range(2):
        e(f'v_permlane32_swap_b32 v{X+4*t}, v{X+4*t+2}\nv_permlane32_swap_b32 v{X+4*t+1}, v{X+4*t+3}')
    e(f's_nop 1\nbuffer_store_dwordx4 {v(X,4)}, v10, s[20:23], s38 offen\nbuffer_store_dwordx4 {v(X+4,4)}, v10, s[20:23], s38 offen offset:32')
    if TICK: e('s_waitcnt vmcnt(0)')
    tick(e, 3)
    tick_store(e, 4, 6)
    e.lab('dn_end')
    e('s_endpgm')
    return kernel_desc('dn_kernel', X + 24), g.lds
```

```python
from common import *

def prep_kernel(e):
    kernel_begin(e, 'prep_kernel')
    e(f'''s_load_dwordx2 s[4:5], s[0:1], {KA['ckv']}
    s_load_dwordx4 s[8:11], s[0:1], {KA['c']}
    s_load_dwordx2 s[6:7], s[0:1], {KA['ws']}
    s_cmp_ge_u32 s2, 304
    s_cbranch_scc1 prep_end
    s_waitcnt lgkmcnt(0)
    s_cmp_ge_u32 s2, 48
    s_cbranch_scc1 prep_relayout''')
    srd(e, 12, 8, 0, 1024)
    srd(e, 16, 10, 0, 512 * 3072 * 2)
    srd(e, 20, 6, WS_MOD, 3072 * 4)
    e('''v_lshrrev_b32 v1, 3, v0
    v_lshlrev_b32 v2, 5, v1
    buffer_load_dwordx4 v[4:7], v2, s[12:15], 0 offen
    buffer_load_dwordx4 v[8:11], v2, s[12:15], 0 offen offset:16
    s_mov_b32 s24, 98304
    v_mul_lo_u32 v2, v1, s24
    v_and_b32 v3, 7, v0
    v_lshl_add_u32 v2, v3, 4, v2
    s_lshl_b32 s24, s2, 7''')
    for i in range(16):
        e(f'buffer_load_dwordx4 v[{32+4*i}:{35+4*i}], v2, s[16:19], s24 offen\ns_add_u32 s24, s24, 6144')
    e('s_waitcnt vmcnt(16)')
    for i in range(8):
        unpack(e, 12 + 2 * i, 13 + 2 * i, 4 + i)
    for i in range(16):
        x = 12 + i
        e(f'''v_mul_f32 v28, 0xbfb8aa3b, v{x}
        v_exp_f32 v28, v28
        s_nop 0
        v_add_f32 v28, 1.0, v28
        v_rcp_f32 v28, v28
        s_nop 0
        v_mul_f32 v{x}, v{x}, v28
        v_cvt_pk_bf16_f32 v{x}, v{x}, v{x}
        v_lshlrev_b32 v{x}, 16, v{x}''')
    for j in range(8):
        e(f'v_mov_b32 v{4+j}, 0')
    for i in range(16):
        e(f's_waitcnt vmcnt({15-i})')
        for j in range(4):
            unpack(e, 28, 29, 32 + 4 * i + j)
            e(f'v_fmac_f32 v{4+2*j}, v28, v{12+i}\nv_fmac_f32 v{5+2*j}, v29, v{12+i}')
    e('''v_lshlrev_b32 v2, 5, v0
    ds_write_b128 v2, v[4:7]
    ds_write_b128 v2, v[8:11] offset:16
    s_waitcnt lgkmcnt(0)
    s_barrier
    v_cmp_gt_u32 vcc, 64, v0
    s_and_saveexec_b64 s[26:27], vcc
    s_cbranch_execz prep_end
    v_lshlrev_b32 v2, 2, v0''')
    for i in range(32):
        e(f'ds_read_b32 v{32+i}, v2 offset:{256*i}')
        if i % 8 == 7:
            e('s_waitcnt lgkmcnt(0)')
    for i in range(1, 32):
        e(f'v_add_f32 v32, v32, v{32+i}')
    e('''v_cvt_pk_bf16_f32 v32, v32, v32
    v_lshlrev_b32 v32, 16, v32
    s_lshr_b32 s24, s2, 3
    s_cmp_eq_u32 s24, 1
    s_cselect_b32 s25, 1.0, 0
    s_cmp_eq_u32 s24, 4
    s_cselect_b32 s25, 1.0, s25
    v_add_f32 v32, s25, v32
    v_cvt_pk_bf16_f32 v32, v32, v32
    v_lshlrev_b32 v32, 16, v32
    s_lshl_b32 s24, s2, 8
    buffer_store_dword v32, v2, s[20:23], s24 offen
    s_endpgm''')
    e.lab('prep_relayout')
    srd(e, 12, 4, 0, 2 * MB)
    srd(e, 16, 6, WS_CKV, 2 * MB)
    e('''s_sub_u32 s2, s2, 48
    v_and_b32 v1, 7, v0
    v_bfe_u32 v2, v0, 3, 1
    v_lshrrev_b32 v3, 4, v0
    v_lshlrev_b32 v4, 10, v1
    v_lshl_add_u32 v4, v2, 3, v4
    v_lshl_add_u32 v4, v3, 5, v4
    s_lshl_b32 s24, s2, 13
    buffer_load_dwordx2 v[8:9], v4, s[12:15], s24 offen
    buffer_load_dwordx2 v[10:11], v4, s[12:15], s24 offen offset:16
    buffer_load_dwordx2 v[12:13], v4, s[12:15], s24 offen offset:512
    buffer_load_dwordx2 v[14:15], v4, s[12:15], s24 offen offset:528
    v_lshlrev_b32 v5, 4, v1
    v_lshl_add_u32 v5, v2, 9, v5
    v_lshl_add_u32 v5, v3, 10, v5
    v_add_u32 v6, 0x4000, v5
    s_lshr_b32 s25, s2, 2
    s_lshl_b32 s25, s25, 15
    s_and_b32 s26, s2, 3
    s_lshl_b32 s26, s26, 7
    s_add_u32 s25, s25, s26
    s_waitcnt vmcnt(2)
    buffer_store_dwordx4 v[8:11], v5, s[16:19], s25 offen
    s_waitcnt vmcnt(1)
    buffer_store_dwordx4 v[12:15], v6, s[16:19], s25 offen''')
    e.lab('prep_end')
    e('s_endpgm')
    return kernel_desc('prep_kernel', 96, 32)

def ln2_kernel(e, nsplit):
    kernel_begin(e, 'ln2_kernel')
    e(f'''s_load_dwordx2 s[4:5], s[0:1], {KA['x']}
    s_load_dwordx2 s[6:7], s[0:1], {KA['ws']}
    s_cmp_ge_u32 s2, 256
    s_cbranch_scc1 ln2_end
    s_waitcnt lgkmcnt(0)''')
    srd(e, 12, 4, 0, 2 * MB)
    srd(e, 16, 6, WS_PART, nsplit * 2 * MB)
    srd(e, 20, 6, WS_MOD, 3072 * 4)
    srd(e, 24, 6, WS_X1, 2 * MB)
    srd(e, 28, 6, WS_H2, 2 * MB)
    e('''v_and_b32 v1, 7, v0
    v_bfe_u32 v2, v0, 3, 1
    v_lshrrev_b32 v3, 4, v0
    v_lshlrev_b32 v5, 4, v1
    v_lshl_add_u32 v5, v2, 9, v5
    v_lshl_add_u32 v5, v3, 10, v5
    v_add_u32 v6, 0x4000, v5
    s_lshr_b32 s33, s2, 2
    s_and_b32 s34, s2, 3
    s_lshl_b32 s34, s34, 7
    s_lshl_b32 s33, s33, 15
    s_add_u32 s33, s33, s34
    s_mov_b32 s35, s33''')
    P = 64
    R = 96
    for sp in range(nsplit):
        r = R + sp * 8
        e(f'buffer_load_dwordx4 v[{r}:{r+3}], v5, s[16:19], s35 offen\nbuffer_load_dwordx4 v[{r+4}:{r+7}], v6, s[16:19], s35 offen\ns_add_u32 s35, s35, {2*MB}')
    e('''v_lshlrev_b32 v4, 10, v1
    v_lshl_add_u32 v4, v2, 3, v4
    v_lshl_add_u32 v4, v3, 5, v4
    s_lshl_b32 s36, s2, 13
    buffer_load_dwordx2 v[8:9], v4, s[12:15], s36 offen
    buffer_load_dwordx2 v[10:11], v4, s[12:15], s36 offen offset:16
    buffer_load_dwordx2 v[12:13], v4, s[12:15], s36 offen offset:512
    buffer_load_dwordx2 v[14:15], v4, s[12:15], s36 offen offset:528
    v_lshlrev_b32 v4, 4, v2
    v_lshl_add_u32 v4, v3, 6, v4''')
    for base, idx in ((16, 2), (32, 4), (48, 3)):
        e(f's_mov_b32 s36, {idx*2048}')
        for q, off in enumerate((0, 32, 1024, 1056)):
            e(f'buffer_load_dwordx4 v[{base+4*q}:{base+4*q+3}], v4, s[20:23], s36 offen offset:{off}')
    e('s_waitcnt vmcnt(16)')
    for i in range(8):
        unpack(e, P + 2 * i, P + 2 * i + 1, R + i)
        for sp in range(1, nsplit):
            unpack(e, 80, 81, R + 8 * sp + i)
            e(f'v_add_f32 v{P+2*i}, v{P+2*i}, v80\nv_add_f32 v{P+2*i+1}, v{P+2*i+1}, v81')
    e('s_waitcnt vmcnt(8)')
    X = P + 16
    for i in range(8):
        unpack(e, X + 2 * i, X + 2 * i + 1, 8 + i)
    for i in range(16):
        e(f'v_fmac_f32 v{X+i}, v{P+i}, v{16+i}')
    for i in range(8):
        e(f'v_cvt_pk_bf16_f32 v{8+i}, v{X+2*i}, v{X+2*i+1}')
    e('buffer_store_dwordx4 v[8:11], v5, s[24:27], s33 offen\nbuffer_store_dwordx4 v[12:15], v6, s[24:27], s33 offen')
    for i in range(8):
        unpack(e, X + 2 * i, X + 2 * i + 1, 8 + i)
    e('s_waitcnt vmcnt(2)')
    layernorm_rows(e, [X + i for i in range(16)], 4, 0, P, 0, [32 + i for i in range(16)], [48 + i for i in range(16)])
    for i in range(8):
        e(f'v_cvt_pk_bf16_f32 v{24+i}, v{X+2*i}, v{X+2*i+1}')
    e('buffer_store_dwordx4 v[24:27], v5, s[28:31], s33 offen\nbuffer_store_dwordx4 v[28:31], v6, s[28:31], s33 offen')
    e.lab('ln2_end')
    e('s_endpgm')
    return kernel_desc('ln2_kernel', R + 8 * nsplit, 40)
```

```python
from common import *
from gemm import pack, G, ROT16
FR, Q, NEGM, P, S0, S1, O = 16, 48, 80, 96, 112, 144, 176
MF = 'v_mfma_f32_32x32x16_bf16'
AH = 6

def kv_dma(which, slot):
    base = slot * 32768 + (65536 if which == 'V' else 0)
    srd_, so, cnt = ('s[24:27]', 's58', 's48') if which == 'K' else ('s[28:31]', 's59', 's49')
    o = []
    for i in range(4):
        pre = f's_add_u32 m0, s57, {base}\ns_nop 0\n' if i == 0 else ''
        post = f'\ns_add_u32 {so}, {so}, 0x8000\ns_cmp_eq_u32 {so}, s48\ns_cselect_b32 {so}, s49, {so}' if i == 3 else ''
        o.append(pre + f'buffer_load_dwordx4 v1, {srd_}, {so} offen offset:{i*1024} lds' + post)
    return o

def max_ops(Sn):
    o = [f'v_max3_f32 v5, v{Sn}, v{Sn+1}, v{Sn+2}']
    for i in range(3, 31, 2):
        o.append(f'v_max3_f32 v5, v5, v{Sn+i}, v{Sn+i+1}')
    o.append(f'v_max_f32 v5, v5, v{Sn+31}')
    return o

def rescale(e, Sn, lab, ret, first=False):
    e.lab(lab)
    e(f'''v_mov_b32 v9, v5
    s_nop 7
    v_permlane32_swap_b32 v9, v5
    s_nop 1''')
    if first:
        e('v_max_f32 v5, v5, v9')
    else:
        e('v_max3_f32 v5, v5, v9, 0\nv_mul_f32 v9, -1.0, v5\nv_exp_f32 v9, v9')
    for i in range(16):
        e(f'v_sub_f32 v{NEGM+i}, v{NEGM+i}, v5')
    for i in range(32):
        e(f'v_sub_f32 v{Sn+i}, v{Sn+i}, v5')
    if not first:
        for i in range(64):
            e(f'v_mul_f32 v{O+i}, v{O+i}, v9')
        e(f'v_mul_f32 v6, v6, v9\nv_mul_f32 v7, v7, v9')
    e(f's_branch {ret}')

def last_body(e):
    e.lab('at_last')
    e(f's_waitcnt lgkmcnt(0)\nv_mov_b32 v8, v{NEGM}')
    for m in range(16, 24): e(rd(0, m))
    if PF:
        e('s_lshl_b32 s36, s2, 3\ns_add_u32 s36, s36, s40\ns_lshl_b32 s36, s36, 10\ns_lshl_b32 s37, s36, 1')
        srd(e, 12, 90, 0, 4 * MB)
        e(f'buffer_load_dwordx4 {v(Q,4)}, v1, s[12:15], s37 offen\nbuffer_load_dwordx4 {v(Q,4)}, v1, s[12:15], s37 offen offset:1024')
        for b in (92, 94, 10):
            srd(e, 16, b, 0, 1792 * 1024)
            e(f'buffer_load_dwordx4 {v(Q,4)}, v1, s[16:19], s36 offen')
    def sm(i):
        e(f'v_exp_f32 v{S0+2*i}, v{S0+2*i}\nv_exp_f32 v{S0+2*i+1}, v{S0+2*i+1}')
    def fin(i):
        e(f'v_cvt_pk_bf16_f32 v{P+i}, v{S0+2*i}, v{S0+2*i+1}\nv_add_f32 v6, v6, v{S0+2*i}\nv_add_f32 v7, v7, v{S0+2*i+1}')
    for i in range(5): sm(i)
    for i in range(4): fin(i)
    for m in range(16, 32):
        kk, dt = (m - 16) >> 2, (m - 16) & 3
        e(f's_waitcnt lgkmcnt({min(7 if m < 18 else 5, 31 - m) if m != 17 else 6})')
        e(f'{MF} {v(O+16*dt,16)}, {v(FR+4*(m%8),4)}, {v(P+4*kk,4)}, {v(O+16*dt,16)}')
        if m >= 18 and m + 6 < 32: e(rd(0, m + 6))
        if m - 11 < 16: sm(m - 11)
        if m - 12 < 16: fin(m - 12)
    e('s_barrier\ns_branch at_fin0')

def merge(e, par, ks, ret):
    send, keep = (O + 32, O) if ks == 0 else (O, O + 32)
    wa = ((par ^ 1) * 32768, par * 32768 + 65536)
    def ad(off):
        return ('v14', off - 65536) if off >= 65536 else ('v13', off)
    for i in range(8):
        a, off = ad(wa[ks] + i * 1024)
        e(f'ds_write_b128 {a}, {v(send+4*i,4)} offset:{off}')
    e('s_waitcnt lgkmcnt(0)\ns_barrier\nv_xor_b32 v9, 0x800, v15\nds_read_b64 v[10:11], v9')
    for i in range(8):
        a, off = ad(wa[ks ^ 1] + i * 1024)
        e(f'ds_read_b128 {v(send+4*i,4)}, {a} offset:{off}')
    e('''s_waitcnt lgkmcnt(8)
    v_min_f32 v9, v8, v10
    v_sub_f32 v8, v9, v8
    v_sub_f32 v10, v9, v10
    v_exp_f32 v8, v8
    v_exp_f32 v10, v10
    s_nop 0
    v_mul_f32 v6, v6, v8
    v_fmac_f32 v6, v11, v10
    v_rcp_f32 v6, v6
    s_nop 0
    v_mul_f32 v8, v8, v6
    v_mul_f32 v10, v10, v6''')
    for i in range(32):
        e(f'v_mul_f32 v{keep+i}, v{keep+i}, v8')
    e('s_waitcnt lgkmcnt(0)')
    for i in range(32):
        e(f'v_fmac_f32 v{keep+i}, v{send+i}, v10')
    pack(e, P, keep, 32)
    for i in range(4):
        e(f'buffer_store_dwordx4 {v(P+4*i,4)}, v1, s[20:23], s52 offen offset:{i*1024}')
    e(f's_branch {ret}')

def rd(par, m):
    if m < 16:
        t, d = m & 1, m >> 1
        return f'ds_read_b128 {v(FR+4*(m%8),4)}, v2 offset:{(par^1)*32768 + (t*8+d)*1024}'
    kk, dt = (m - 16) >> 2, (m - 16) & 3
    return f'ds_read_b128 {v(FR+4*(m%8),4)}, v3 offset:{par*32768 + (dt*4+kk)*1024}'

def body(e, par):
    Sc, Sn = (S0, S1) if par == 0 else (S1, S0)
    e.lab(f'at_it{par}')
    e(f's_cmp_lg_u32 s54, s55\ns_cbranch_scc1 at_nq{par}')
    if par == 0:
        e('s_cmp_eq_u32 s54, 16\ns_cbranch_scc1 at_last')
    for i in range(8):
        e(f'ds_read_b128 {v(Q+4*i,4)}, v12 offset:{i*1024}')
    e(f'v_mov_b32 v8, v{NEGM}')
    for i in range(16):
        e(f'v_mov_b32 v{NEGM+i}, 0')
    e('s_waitcnt lgkmcnt(0)')
    e.lab(f'at_nq{par}')
    def mf(m):
        f = v(FR + 4 * (m % 8), 4)
        if m < 16:
            t, d = m & 1, m >> 1
            return f'{MF} {v(Sn+16*t,16)}, {f}, {v(Q+4*d,4)}, {v(NEGM,16) if d == 0 else v(Sn+16*t,16)}'
        kk, dt = (m - 16) >> 2, (m - 16) & 3
        return f'{MF} {v(O+16*dt,16)}, {f}, {v(P+4*kk,4)}, {v(O+16*dt,16)}'
    dm = kv_dma('K', par) + kv_dma('V', par ^ 1)
    mx = max_ops(Sn)
    sl = [[] for _ in range(32)]
    for i in range(32):
        sl[i * 25 // 32].append(f'v_exp_f32 v{Sc+i}, v{Sc+i}')
    for i in range(16):
        sl[(2 * i + 1) * 25 // 32 + 1].append(f'v_cvt_pk_bf16_f32 v{P+i}, v{Sc+2*i}, v{Sc+2*i+1}\nv_add_f32 v6, v6, v{Sc+2*i}\nv_add_f32 v7, v7, v{Sc+2*i+1}')
    for i in range(8):
        sl[2 * i].append(dm[i])
    for i, x in enumerate(mx):
        sl[22 + i * 10 // 16].append(x)
    for m in range(32):
        if m == 16:
            e(f's_cmp_eq_u32 s54, s56\ns_cbranch_scc1 at_mask{par}')
            e.lab(f'at_mret{par}')
        if m == 28:
            e('s_waitcnt lgkmcnt(0)\ns_barrier' if '6' in os.environ.get('EXP', '') else 's_waitcnt vmcnt(0) lgkmcnt(0)\ns_barrier')
            for k in range(4): e(rd(par ^ 1, k))
        if m < 28:
            e(f's_waitcnt lgkmcnt({min(AH, 32 - m) - 1})')
        e(mf(m))
        if m + AH < 32 and '3' not in os.environ.get('EXP', ''):
            e(rd(par, m + AH))
        if m in (29, 30):
            e(rd(par ^ 1, m - 25))
        for x in sl[m]:
            X = os.environ.get('EXP', '')
            if '1' in X and 'buffer_load' in x: continue
            if '2' in X and 'v_exp' in x: continue
            if '4' in X and 'v_cvt' in x: continue
            e(x)
    e(f'''s_cmp_eq_u32 s54, s55
    s_cbranch_scc1 at_fin{par}''')
    e(f'''v_cmp_lt_f32 vcc, s50, v5
    s_add_u32 s54, s54, 1
    s_cmp_lg_u64 vcc, 0
    s_cbranch_scc1 at_rs{par}''')
    if par == 1:
        e('s_branch at_it0')

def tails(e, par):
    Sn = S1 if par == 0 else S0
    rescale(e, Sn, f'at_rs{par}', f'at_it{par^1}')
    rescale(e, Sn, f'at_fs{par}', f'at_it{par^1}', True)
    e.lab(f'at_mask{par}')
    e('s_mov_b32 s56, 15\nv_mov_b32 v9, 0xf149f2ca\ns_nop 7\ns_nop 3')
    for i in range(0, 32, 4):
        for k in range(4):
            r = i + k
            c = (r >> 4) * 32 + 8 * ((r & 15) >> 2) + (r & 3)
            e(f'v_cmp_gt_i32 s[{60+2*k}:{61+2*k}], {c}, v4')
        e('s_nop 0')
        for k in range(4):
            e(f'v_cndmask_b32 v{Sn+i+k}, v{Sn+i+k}, v9, s[{60+2*k}:{61+2*k}]')
    e(f's_branch at_mret{par}')
    e.lab(f'at_fin{par}')
    e(f'''v_add_f32 v6, v6, v7
    v_mov_b32 v7, v6
    s_nop 1
    v_permlane32_swap_b32 v7, v6
    s_nop 1
    v_add_f32 v6, v6, v7
    v_mov_b32 v9, v6
    s_nop 1
    ds_write_b64 v15, v[8:9]
    s_nop 3
    s_cmp_eq_u32 s42, 0
    s_cbranch_scc0 at_mg1_{par}''')
    merge(e, par, 0, f'at_mgd{par}')
    e.lab(f'at_mg1_{par}')
    merge(e, par, 1, f'at_mgd{par}')
    e.lab(f'at_mgd{par}')
    e('s_cmp_eq_u32 s54, 16\ns_cbranch_scc1 at_done\ns_barrier\ns_mov_b32 s55, 16\ns_mov_b32 s52, s53')
    e('s_add_u32 s54, s54, 1\nv_mov_b32 v6, 0\nv_mov_b32 v7, 0')
    for i in range(64):
        e(f'v_mov_b32 v{O+i}, 0')
    e(f's_branch at_fs{par}')

def attn_kernel(e):
    g = G(8, 2, 2, 8, 2, 2, 4, 16, 8192, [(0, 0), (1, 0)], vb=65536)
    kernel_begin(e, 'attn_kernel')
    tick(e, 0)
    e(f'''s_load_dwordx2 s[8:9], s[0:1], {KA['wq']}
    s_load_dwordx2 s[6:7], s[0:1], {KA['ws']}
    s_load_dwordx2 s[90:91], s[0:1], {KA['wo']}
    s_load_dwordx4 s[92:95], s[0:1], {KA['wg']}
    s_load_dwordx2 s[10:11], s[0:1], {KA['wd']}
    s_cmp_ge_u32 s2, 256
    s_cbranch_scc1 at_end''')
    code_pf(e, 'at', 'at_end', g.ACC + 2)
    e(f'''    s_and_b32 s33, s2, 7
    s_lshl_b32 s33, s33, 2
    s_bfe_u32 s34, s2, 0x20003
    s_add_u32 s33, s33, s34
    s_lshr_b32 s34, s2, 5
    s_sub_u32 s35, 15, s34''')
    g.setup(e, f's_mul_i32 s43, s42, {g.PAN}')
    e('s_waitcnt lgkmcnt(0)')
    srd(e, 16, 8, 0, 4 * MB)
    srd(e, 12, 6, WS_H1, 2 * MB)
    e('''s_cmp_eq_u32 s42, 0
    s_cselect_b32 s46, s35, s34
    s_lshl_b32 s46, s46, 2
    s_add_u32 s46, s46, s41
    s_lshl_b32 s46, s46, 15
    s_lshl_b32 s47, s33, 8
    s_lshr_b32 s36, s40, 2
    s_lshl_b32 s36, s36, 7
    s_add_u32 s47, s47, s36
    s_and_b32 s36, s40, 3
    s_lshl_b32 s36, s36, 16
    s_add_u32 s47, s47, s36''')
    g.prologue(e, ROT16)
    srd(e, 24, 6, WS_K, 16 * MB)
    srd(e, 28, 6, WS_V, 16 * MB)
    srd(e, 20, 6, WS_CTX, 16 * MB)
    e('''s_lshl_b32 s36, s40, 12
    s_add_u32 s36, s36, 0x18000
    v_add_u32 v110, s36, v1
    s_and_b32 s41, s40, 3
    s_lshr_b32 s42, s40, 2
    s_lshl_b32 s57, s40, 12
    s_lshl_b32 s49, s33, 19
    s_add_u32 s49, s49, s57
    s_mov_b32 s58, s49
    s_mov_b32 s59, s49
    s_add_u32 s48, s35, 1
    s_lshl_b32 s48, s48, 15
    s_add_u32 s48, s48, s49
    s_lshl_b32 s36, s41, 18
    s_lshl_b32 s37, s33, 13
    s_add_u32 s36, s36, s37
    s_lshl_b32 s37, s42, 12
    s_add_u32 s36, s36, s37
    s_lshl_b32 s52, s35, 20
    s_add_u32 s52, s52, s36
    s_lshl_b32 s53, s34, 20
    s_add_u32 s53, s53, s36
    s_mov_b32 s54, 0
    s_mov_b32 s55, s35
    s_sub_u32 s56, s35, 1
    s_mov_b32 s50, 0x41f00000''')
    for i in range(64):
        e(f'v_mov_b32 v{O+i}, 0')
    g.loop(e, 'WA', {12: kv_dma('K', 0) + kv_dma('K', 1), 13: kv_dma('V', 0)})
    e('s_barrier')
    for i in range(64):
        e(f'v_mul_f32 v{g.ACC+i}, 0x3e0293ee, v{g.ACC+i}')
    pack(e, S1, g.ACC, 64)
    for i in range(8):
        e(f'ds_write_b128 v110, {v(S1+4*i,4)} offset:{(i>>2)*32768+(i&3)*1024}')
    e('''v_lshrrev_b32 v5, 4, v1
    v_lshrrev_b32 v4, 5, v5
    v_and_b32 v5, 31, v5
    v_lshlrev_b32 v4, 2, v4
    v_sub_u32 v4, v5, v4
    s_lshl_b32 s36, s41, 5
    s_lshl_b32 s37, s42, 6
    s_sub_u32 s36, s36, s37
    v_add_u32 v4, s36, v4
    v_lshlrev_b32 v15, 3, v0
    v_add_u32 v15, 0x20000, v15
    s_lshl_b32 s36, s42, 14
    v_add_u32 v2, s36, v1
    v_add_u32 v3, 0x10000, v2
    s_lshl_b32 s36, s41, 13
    v_add_u32 v13, s36, v1
    v_add_u32 v14, 0x10000, v13
    v_add_u32 v12, 0x20000, v13
    s_waitcnt vmcnt(8) lgkmcnt(0)
    s_barrier''')
    for i in range(8):
        e(f'ds_read_b128 {v(Q+4*i,4)}, v14 offset:{32768+i*1024}')
    for i in range(16):
        e(f'v_mov_b32 v{NEGM+i}, 0')
    e('v_mov_b32 v6, 0\nv_mov_b32 v7, 0\ns_waitcnt lgkmcnt(0)')
    for h in range(2):
        for m in range(8):
            e(f'ds_read_b128 {v(FR+4*m,4)}, v2 offset:{((m&1)*8+h*4+(m>>1))*1024}')
        for m in range(8):
            t, d = m & 1, h * 4 + (m >> 1)
            e(f's_waitcnt lgkmcnt({7-m})\n{MF} {v(S0+16*t,16)}, {v(FR+4*m,4)}, {v(Q+4*d,4)}, {"0" if d == 0 else v(S0+16*t,16)}')
    e('s_waitcnt vmcnt(0)\ns_barrier')
    tick(e, 3)
    for k in range(AH): e(rd(0, k))
    e('s_nop 7')
    for x in max_ops(S0): e(x)
    e('s_branch at_fs1')
    body(e, 0)
    body(e, 1)
    tails(e, 0)
    tails(e, 1)
    last_body(e)
    e.lab('at_done')
    e('s_waitcnt vmcnt(0)')
    tick(e, 4)
    tick_store(e, 5, 2)
    e.lab('at_end')
    e('s_endpgm')
    return kernel_desc('attn_kernel', 240), 160 * 1024
```

```python
from common import *

def interleave(main, extra):
    out = []
    n, m = len(main), len(extra)
    for i, x in enumerate(main):
        out.append(x)
        out += [extra[k] for k in range(m) if k * n // m == i]
    return out

class G:
    def __init__(s, NW, WC, TR, RT, KS, NP, NS, nst, ld, wtiles, base=0, vb=0, U=1):
        s.__dict__.update(locals())
        s.BK = KS * 16
        s.ACT = RT * KS * 1024
        s.PAN = s.BK * 128
        s.STG = s.ACT + NP * s.PAN
        s.na = RT * KS // NW
        s.nwd = NP * (s.BK // 8) // NW
        s.L = s.na + s.nwd
        s.TC = len(wtiles)
        s.lds = base + NS * s.STG
        s.F = 12
        s.F1 = (TR + s.TC) * 4
        s.FS = s.F1 * U
        s.ACC = s.F + 2 * s.FS
        s.NV = s.ACC + TR * s.TC * 16
    def acc(s, tr, tc):
        return s.ACC + (tr * s.TC + tc) * 16
    def setup(s, e, wpan):
        lg = {1: 0, 2: 1, 4: 2, 8: 3}
        e(f'''v_and_b32 v1, 63, v0
        v_lshrrev_b32 v2, 6, v0
        s_nop 0
        v_readfirstlane_b32 s40, v2
        v_lshrrev_b32 v8, 3, v1
        v_and_b32 v9, 7, v1
        v_bfe_u32 v10, v1, 4, 1
        v_lshrrev_b32 v11, 2, v9
        v_xor_b32 v10, v10, v11
        v_and_b32 v9, 3, v9
        v_mul_u32_u24 v8, {s.ld}, v8
        v_lshl_add_u32 v8, v10, 6, v8
        v_lshl_add_u32 v8, v9, 4, v8
        s_lshr_b32 s41, s40, {lg[s.WC]}
        s_and_b32 s42, s40, {s.WC - 1}
        v_lshrrev_b32 v4, 5, v1
        v_lshlrev_b32 v4, 9, v4
        v_bfe_u32 v5, v1, 2, 2
        v_lshl_add_u32 v4, v5, 7, v4
        v_bfe_u32 v5, v1, 4, 1
        v_lshl_add_u32 v4, v5, 5, v4
        v_and_b32 v5, 3, v1
        v_lshl_add_u32 v4, v5, 3, v4
        v_bfe_u32 v5, v1, 3, 1
        v_lshl_add_u32 v4, v5, 6, v4
        v_lshlrev_b32 v1, 4, v1
        s_mul_i32 s43, s41, {s.TR * s.KS * 1024}
        s_add_u32 s43, s43, {s.vb}
        v_add_u32 v2, s43, v1
        v_add_u32 v3, 0x10000, v2
        v_add_u32 v4, {s.vb}, v4''')
        if wpan:
            e(wpan + '\nv_add_u32 v4, s43, v4')
        e('v_xor_b32 v6, 64, v4\nv_add_u32 v5, 0x10000, v4\nv_add_u32 v7, 0x10000, v6')
        for i in range(1, s.nwd):
            e(f'v_add_u32 v{8+i}, {i * (8 * s.ld - 1024)}, v8')
        e(f's_mul_i32 s44, s40, {s.na * 1024}\ns_mul_i32 s45, s40, {s.nwd * 1024}\ns_add_u32 s45, s45, {s.ACT + s.vb}\ns_add_u32 s44, s44, {s.vb}')
    def dma(s, st):
        b = s.base + (st % s.NS) * s.STG
        o = []
        for i in range(s.na):
            pre = f's_add_u32 m0, s44, {b}\ns_nop 0\n' if i == 0 else ''
            post = f'\ns_add_u32 s46, s46, {s.KS * 1024}\ns_cmp_eq_u32 s46, s60\ns_cselect_b32 s46, s62, s46' if i == s.na - 1 else ''
            o.append(pre + f'buffer_load_dwordx4 v1, s[12:15], s46 offen offset:{i*1024} lds' + post)
        for i in range(s.nwd):
            pre = f's_add_u32 m0, s45, {b}\ns_nop 0\n' if i == 0 else ''
            post = f'\ns_add_u32 s47, s47, {s.BK * s.ld}\ns_cmp_eq_u32 s47, s61\ns_cselect_b32 s47, s63, s47' if i == s.nwd - 1 else ''
            o.append(pre + f'buffer_load_dwordx4 v{8+i}, s[16:19], s47 offen offset:{i*1024} lds' + post)
        return o
    def rd(s, op, d, n, a, off):
        if off >= 65536:
            a += 1; off -= 65536
        return f'{op} {v(d, n)}, v{a} offset:{off}'
    def reads(s, st, kg, fs):
        return sum([s.reads1(st, kg * s.U + u, s.F + fs * s.FS + u * s.F1) for u in range(s.U)], [])
    def reads1(s, st, ks, f):
        b = s.base + (st % s.NS) * s.STG
        o = []
        for tc, (j, po) in enumerate(s.wtiles):
            for h in range(2):
                o.append(s.rd('ds_read_b64_tr_b16', f + (s.TR + tc) * 4 + 2 * h, 2, 4 + 2 * j, b + s.ACT + po + ks * 2048 + h * 1024))
            if tc == 0:
                o.append(s.rd('ds_read_b128', f, 4, 2, b + ks * 1024))
        for tr in range(1, s.TR):
            o.append(s.rd('ds_read_b128', f + tr * 4, 4, 2, b + (tr * s.KS + ks) * 1024))
        return o
    def mfmas(s, fs, mode, first=False):
        return sum([s.mfmas1(s.F + fs * s.FS + u * s.F1, mode, first and u == 0) for u in range(s.U)], [])
    def mfmas1(s, f, mode, first):
        o = []
        for tr in range(s.TR):
            for tc in range(s.TC):
                a, w = v(f + tr * 4, 4), v(f + (s.TR + tc) * 4, 4)
                if mode == 'AW':
                    a, w = w, a
                c = v(s.acc(tr, tc), 16)
                o.append(f'v_mfma_f32_32x32x16_bf16 {c}, {w}, {a}, {"0" if first else c}')
        return o
    def prologue(s, e, rot):
        e(rot + f'''
        s_mov_b32 s62, s46
        s_mov_b32 s63, s47
        s_add_u32 s60, s46, {s.nst * s.KS * 1024}
        s_add_u32 s61, s47, {s.nst * s.BK * s.ld}
        s_mul_i32 s65, s64, {s.KS * 1024}
        s_add_u32 s46, s46, s65
        s_mul_i32 s65, s64, {s.BK * s.ld}
        s_add_u32 s47, s47, s65''')
        for st in range(s.NS):
            for x in s.dma(st):
                e(x)
    def loop(s, e, mode, extra={}):
        xc = 0
        R = len(s.reads(0, 0, 0))
        e(f's_waitcnt vmcnt({(s.NS - 1) * s.L})\ns_barrier')
        tick(e, 1)
        for x in s.reads(0, 0, 0): e(x)
        fs = 0
        for st in range(s.nst):
            for ks in range(s.KS // s.U - 1):
                for x in s.reads(st, ks + 1, fs ^ 1): e(x)
                e(f's_waitcnt lgkmcnt({R})')
                for x in s.mfmas(fs, mode, st == 0 and ks == 0): e(x)
                fs ^= 1
            if st + 1 < s.nst:
                pend = min(s.NS - 2, s.nst - st - 2)
                e(f's_waitcnt vmcnt({pend * s.L + xc}) lgkmcnt(0)\ns_barrier')
                for x in s.reads(st + 1, 0, fs ^ 1): e(x)
            else:
                e('s_waitcnt lgkmcnt(0)')
            d = s.dma(st + s.NS) if st + s.NS < s.nst else []
            d = d + extra.get(st, []); xc += len(extra.get(st, []))
            for x in interleave(s.mfmas(fs, mode, st == 0 and s.KS == s.U), d): e(x)
            fs ^= 1
        e('s_nop 7\ns_nop 7')
        tick(e, 2)

ROT16 = 's_mov_b32 s64, 0'
def ROT2(h):
    return f's_lshr_b32 s64, s2, 3\ns_lshr_b32 s65, s2, 5\ns_add_u32 s64, s64, s65\ns_and_b32 s64, s64, 1\ns_mul_i32 s64, s64, {h}'
def pack(e, d, a, n=16):
    for i in range(n // 2):
        e(f'v_cvt_pk_bf16_f32 v{d+i}, v{a+2*i}, v{a+2*i+1}')

def kv_kernel(e):
    g = G(8, 4, 4, 8, 2, 4, 4, 16, 8192, [(0, 0), (1, 0)], base=1024)
    kernel_begin(e, 'kv_kernel')
    tick(e, 0)
    e(f'''s_load_dwordx2 s[4:5], s[0:1], {KA['x']}
    s_load_dwordx4 s[8:11], s[0:1], {KA['wuk']}
    s_load_dwordx2 s[56:57], s[0:1], {KA['wq']}
    s_load_dwordx2 s[6:7], s[0:1], {KA['ws']}
    s_cmp_ge_u32 s2, 256
    s_cbranch_scc1 kv_end
    s_and_b32 s33, s2, 7
    s_lshl_b32 s33, s33, 1
    s_bfe_u32 s34, s2, 0x10003
    s_add_u32 s33, s33, s34
    s_and_b32 s34, s2, 16
    s_add_u32 s33, s33, s34
    s_lshr_b32 s34, s2, 5''')
    g.setup(e, f's_mul_i32 s43, s42, {g.PAN}')
    e('''s_waitcnt lgkmcnt(0)
    s_cmp_ge_u32 s33, 16
    s_cselect_b32 s8, s10, s8
    s_cselect_b32 s9, s11, s9
    s_and_b32 s35, s33, 15''')
    srd(e, 12, 6, WS_CKV, 2 * MB)
    srd(e, 16, 8, 0, 4 * MB)
    srd(e, 20, 4, 0, 2 * MB)
    srd(e, 24, 6, WS_MOD, 3072 * 4)
    srd(e, 28, 6, WS_H1, 2 * MB)
    A = g.NV
    e(f'''s_lshl_b32 s46, s34, 3
    s_add_u32 s46, s46, s40
    s_lshl_b32 s46, s46, 15
    s_lshr_b32 s47, s40, 1
    s_lshl_b32 s47, s47, 7
    s_and_b32 s36, s40, 1
    s_lshl_b32 s36, s36, 17
    s_add_u32 s47, s47, s36
    s_lshl_b32 s36, s35, 9
    s_add_u32 s47, s47, s36''')
    g.prologue(e, ROT16)
    e(f'''v_and_b32 v{A}, 7, v0
    v_bfe_u32 v{A+1}, v0, 3, 1
    v_lshrrev_b32 v{A+2}, 4, v0
    v_lshlrev_b32 v{A+4}, 10, v{A}
    v_lshl_add_u32 v{A+4}, v{A+1}, 3, v{A+4}
    v_lshl_add_u32 v{A+4}, v{A+2}, 5, v{A+4}
    s_lshl_b32 s38, s2, 13
    s_mov_b32 s58, 0x400000
    s_mov_b32 s59, 0x00020000
    s_lshl_b32 s66, s2, 14
    s_lshl_b32 s67, s40, 11
    s_add_u32 s66, s66, s67
    v_lshlrev_b32 v{A+5}, 4, v{A+1}
    v_lshl_add_u32 v{A+5}, v{A+2}, 6, v{A+5}
    v_lshlrev_b32 v{A+3}, 4, v{A}
    v_lshl_add_u32 v{A+3}, v{A+1}, 9, v{A+3}
    v_lshl_add_u32 v{A+3}, v{A+2}, 10, v{A+3}
    s_lshr_b32 s39, s2, 2
    s_lshl_b32 s39, s39, 15
    s_and_b32 s37, s2, 3
    s_lshl_b32 s37, s37, 7
    s_add_u32 s39, s39, s37
    s_lshl_b32 s36, s35, 1
    s_lshr_b32 s37, s42, 1
    s_add_u32 s36, s36, s37
    s_lshl_b32 s36, s36, 19
    s_lshl_b32 s37, s34, 16
    s_add_u32 s36, s36, s37
    s_lshl_b32 s37, s41, 15
    s_add_u32 s36, s36, s37
    s_and_b32 s37, s42, 1
    s_cmp_ge_u32 s33, 16
    s_cbranch_scc1 kv_v
    s_lshl_b32 s37, s37, 12
    s_add_u32 s36, s36, s37''')
    X = {12: [f'buffer_load_dwordx2 v[{A+8}:{A+9}], v{A+4}, s[20:23], s38 offen', f'buffer_load_dwordx2 v[{A+10}:{A+11}], v{A+4}, s[20:23], s38 offen offset:16'] +
         [f'buffer_load_dwordx4 {v(A+16+4*i,4)}, v{A+5}, s[24:27], 0 offen offset:{o}' for i, o in enumerate((0, 32, 2048, 2080))]}
    if PF:
        X[11] = [f'buffer_load_dwordx4 {v(A+12,4)}, v1, s[56:59], s66 offen offset:{o}' for o in (0, 1024)]
    srd(e, 52, 6, WS_K, 16 * MB)
    g.loop(e, 'WA', X)
    e('s_waitcnt vmcnt(0)')
    for tr in range(4):
        for tc in range(2):
            d = g.F + ((tr * 2 + tc) % 4) * 8
            pack(e, d, g.acc(tr, tc))
            e(f'buffer_store_dwordx4 {v(d,4)}, v1, s[52:55], s36 offen offset:{tc*2048}\nbuffer_store_dwordx4 {v(d+4,4)}, v1, s[52:55], s36 offen offset:{tc*2048+1024}')
        e('s_add_u32 s36, s36, 8192')
    e('s_branch kv_ln')
    e.lab('kv_v')
    e('s_lshl_b32 s37, s37, 13\ns_add_u32 s36, s36, s37')
    srd(e, 52, 6, WS_V, 16 * MB)
    g.loop(e, 'AW', X)
    e('s_waitcnt vmcnt(0)')
    i = 0
    for t2 in range(2):
        for tc in range(2):
            for t1 in range(2):
                d = g.F + (i % 4) * 8; i += 1
                pack(e, d, g.acc(t2 * 2 + t1, tc))
                e(f'buffer_store_dwordx4 {v(d,4)}, v1, s[52:55], s36 offen offset:{t1*2048}\nbuffer_store_dwordx4 {v(d+4,4)}, v1, s[52:55], s36 offen offset:{t1*2048+1024}')
            e(f's_add_u32 s36, s36, {4096 if tc == 0 else 16384 - 4096}')
    e.lab('kv_ln')
    for i in range(4):
        unpack(e, A + 32 + 2 * i, A + 33 + 2 * i, A + 8 + i)
    layernorm_rows(e, [A + 32 + i for i in range(8)], 8, 0, A + 40, 0, [A + 24 + i for i in range(8)], [A + 16 + i for i in range(8)])
    pack(e, A + 8, A + 32, 8)
    e(f'buffer_store_dwordx4 v[{A+8}:{A+11}], v{A+3}, s[28:31], s39 offen')
    if TICK: e('s_waitcnt vmcnt(0)')
    tick(e, 3)
    tick_store(e, 4, 1)
    e.lab('kv_end')
    e('s_endpgm')
    return kernel_desc('kv_kernel', A + 60), g.lds

def op_kernel(e):
    g = G(8, 2, 1, 4, 4, 2, 4, 16, 1024, [(0, 0), (1, 0)], U=2)
    kernel_begin(e, 'op_kernel')
    tick(e, 0)
    e(f'''s_load_dwordx2 s[8:9], s[0:1], {KA['wo']}
    s_load_dwordx2 s[6:7], s[0:1], {KA['ws']}
    s_cmp_ge_u32 s2, 256
    s_cbranch_scc1 op_end
    s_bfe_u32 s33, s2, 0x20001
    s_and_b32 s34, s2, 1
    s_lshl_b32 s34, s34, 3
    s_lshr_b32 s35, s2, 5
    s_add_u32 s34, s34, s35
    s_bfe_u32 s35, s2, 0x20003''')
    g.setup(e, f's_mul_i32 s43, s42, {g.PAN}')
    e('s_waitcnt lgkmcnt(0)')
    srd(e, 12, 6, WS_CTX, 16 * MB)
    srd(e, 16, 8, 0, 4 * MB)
    srd(e, 20, 6, WS_PART, 8 * MB)
    e('''s_lshl_b32 s46, s34, 2
    s_add_u32 s46, s46, s41
    s_lshl_b32 s46, s46, 18
    s_lshl_b32 s36, s33, 16
    s_add_u32 s46, s46, s36
    s_lshl_b32 s36, s42, 11
    s_add_u32 s46, s46, s36
    s_lshr_b32 s47, s40, 2
    s_lshl_b32 s47, s47, 7
    s_and_b32 s36, s40, 3
    s_lshl_b32 s36, s36, 14
    s_add_u32 s47, s47, s36
    s_lshl_b32 s36, s35, 8
    s_add_u32 s47, s47, s36
    s_lshl_b32 s36, s33, 20
    s_add_u32 s47, s47, s36''')
    g.prologue(e, ROT2(8))
    e('''s_lshl_b32 s36, s33, 21
    s_lshl_b32 s37, s34, 17
    s_add_u32 s36, s36, s37
    s_lshl_b32 s37, s41, 15
    s_add_u32 s36, s36, s37
    s_lshl_b32 s37, s35, 13
    s_add_u32 s36, s36, s37
    s_lshl_b32 s37, s42, 12
    s_add_u32 s36, s36, s37''')
    g.loop(e, 'WA')
    for tr in range(1):
        d = g.F + tr * 16
        pack(e, d, g.acc(tr, 0), 32)
        for q in range(4):
            e(f'buffer_store_dwordx4 {v(d+4*q,4)}, v1, s[20:23], s36 offen offset:{q*1024}')
        e('s_add_u32 s36, s36, 32768')
    if TICK: e('s_waitcnt vmcnt(0)')
    tick(e, 3)
    tick_store(e, 4, 3)
    e.lab('op_end')
    e('s_endpgm')
    return kernel_desc('op_kernel', g.NV), g.lds

def gu_kernel(e):
    g = G(8, 2, 2, 8, 2, 2, 5, 16, 3584, [(0, 0), (0, 4096)])
    kernel_begin(e, 'gu_kernel')
    tick(e, 0)
    e(f'''s_load_dwordx4 s[8:11], s[0:1], {KA['wg']}
    s_load_dwordx2 s[6:7], s[0:1], {KA['ws']}
    s_cmp_ge_u32 s2, 224
    s_cbranch_scc1 gu_end
    s_and_b32 s34, s2, 7
    s_lshr_b32 s35, s2, 3''')
    g.setup(e, None)
    e('''s_lshl_b32 s43, s42, 6
    v_xor_b32 v4, s43, v4
    v_xor_b32 v5, s43, v5
    s_waitcnt lgkmcnt(0)
    s_cmp_ge_u32 s40, 4
    s_cselect_b32 s8, s10, s8
    s_cselect_b32 s9, s11, s9''')
    srd(e, 12, 6, WS_H2, 2 * MB)
    srd(e, 16, 8, 0, 512 * 3584)
    srd(e, 20, 6, WS_HH, 7 * MB)
    e(f'''s_lshl_b32 s46, s34, 3
    s_add_u32 s46, s46, s40
    s_lshl_b32 s46, s46, 15
    s_and_b32 s47, s40, 3
    s_mul_i32 s47, s47, {8*3584}
    s_lshl_b32 s36, s35, 7
    s_add_u32 s47, s47, s36''')
    g.prologue(e, ROT16)
    e(f'''s_lshl_b32 s36, s34, 3
    s_lshl_b32 s37, s41, 1
    s_add_u32 s36, s36, s37
    s_mul_i32 s36, s36, {112*1024}
    s_lshl_b32 s37, s35, 12
    s_add_u32 s36, s36, s37
    s_lshl_b32 s37, s42, 11
    s_add_u32 s36, s36, s37''')
    g.loop(e, 'WA')
    for tr in range(2):
        a, b = g.acc(tr, 0), g.acc(tr, 1)
        for i in range(16):
            e(f'v_mul_f32 v{a+i}, v{a+i}, v{b+i}')
        d = g.F + tr * 8
        pack(e, d, a)
        e(f'buffer_store_dwordx4 {v(d,4)}, v1, s[20:23], s36 offen\nbuffer_store_dwordx4 {v(d+4,4)}, v1, s[20:23], s36 offen offset:1024\ns_add_u32 s36, s36, {112*1024}')
    if TICK: e('s_waitcnt vmcnt(0)')
    tick(e, 3)
    tick_store(e, 4, 5)
    e.lab('gu_end')
    e('s_endpgm')
    return kernel_desc('gu_kernel', g.NV), g.lds

def dn_kernel(e):
    g = G(4, 2, 1, 2, 4, 1, 7, 28, 1024, [(0, 0)], U=4)
    kernel_begin(e, 'dn_kernel')
    tick(e, 0)
    e(f'''s_load_dwordx2 s[8:9], s[0:1], {KA['wd']}
    s_load_dwordx2 s[6:7], s[0:1], {KA['ws']}
    s_load_dwordx2 s[4:5], s[0:1], {KA['out']}
    s_cmp_ge_u32 s2, 256
    s_cbranch_scc1 dn_end
    s_and_b32 s34, s2, 7
    s_lshl_b32 s34, s34, 2
    s_bfe_u32 s35, s2, 0x20003
    s_add_u32 s34, s34, s35
    s_lshr_b32 s35, s2, 5''')
    g.setup(e, None)
    e('''s_lshl_b32 s43, s42, 6
    v_xor_b32 v4, s43, v4
    v_xor_b32 v5, s43, v5
    s_waitcnt lgkmcnt(0)''')
    srd(e, 12, 6, WS_HH, 7 * MB)
    srd(e, 16, 8, 0, 1792 * 1024)
    srd(e, 20, 4, 0, 2 * MB)
    srd(e, 24, 6, WS_X1, 2 * MB)
    srd(e, 28, 6, WS_MOD, 3072 * 4)
    X = g.NV
    e(f'''s_lshl_b32 s36, s34, 1
    s_add_u32 s36, s36, s41
    s_lshl_b32 s37, s35, 1
    s_add_u32 s37, s37, s42
    s_lshl_b32 s38, s36, 15
    s_lshl_b32 s39, s37, 11
    s_add_u32 s39, s38, s39
    buffer_load_dwordx4 v[{X}:{X+3}], v1, s[24:27], s39 offen
    buffer_load_dwordx4 v[{X+4}:{X+7}], v1, s[24:27], s39 offen offset:1024
    v_lshrrev_b32 v10, 9, v1
    v_lshlrev_b32 v10, 4, v10
    s_lshl_b32 s39, s37, 7
    s_add_u32 s39, s39, {5*2048}''')
    for q in range(4):
        e(f'buffer_load_dwordx4 {v(X+8+4*q,4)}, v10, s[28:31], s39 offen offset:{32*q}')
    e(f'''v_and_b32 v11, 0x1f0, v1
    v_lshl_add_u32 v10, v11, 6, v10
    s_lshl_b32 s37, s37, 6
    s_add_u32 s38, s38, s37
    s_mul_i32 s46, s36, {112*1024}
    s_lshl_b32 s37, s42, 11
    s_add_u32 s46, s46, s37
    s_lshl_b32 s47, s40, 14
    s_lshl_b32 s37, s35, 7
    s_add_u32 s47, s47, s37''')
    g.prologue(e, ROT2(14))
    g.loop(e, 'WA')
    a = g.acc(0, 0)
    F = g.F
    for i in range(8):
        unpack(e, F + 2 * i, F + 2 * i + 1, X + i)
    for i in range(16):
        e(f'v_fmac_f32 v{F+i}, v{a+i}, v{X+8+i}')
    pack(e, X, F)
    e('s_nop 1')
    for t in range(2):
        e(f'v_permlane32_swap_b32 v{X+4*t}, v{X+4*t+2}\nv_permlane32_swap_b32 v{X+4*t+1}, v{X+4*t+3}')
    e(f's_nop 1\nbuffer_store_dwordx4 {v(X,4)}, v10, s[20:23], s38 offen\nbuffer_store_dwordx4 {v(X+4,4)}, v10, s[20:23], s38 offen offset:32')
    if TICK: e('s_waitcnt vmcnt(0)')
    tick(e, 3)
    tick_store(e, 4, 6)
    e.lab('dn_end')
    e('s_endpgm')
    e.lab('code_end')
    return kernel_desc('dn_kernel', X + 24), g.lds
```

```python
from common import *

def prep_kernel(e):
    kernel_begin(e, 'prep_kernel')
    e(f'''s_load_dwordx2 s[4:5], s[0:1], {KA['ckv']}
    s_load_dwordx4 s[8:11], s[0:1], {KA['c']}
    s_load_dwordx2 s[6:7], s[0:1], {KA['ws']}
    s_load_dwordx4 s[28:31], s[0:1], {KA['wuk']}
    s_cmp_ge_u32 s2, 304
    s_cbranch_scc1 prep_end
    s_waitcnt lgkmcnt(0)
    s_cmp_ge_u32 s2, 48
    s_cbranch_scc1 prep_relayout''')
    srd(e, 12, 8, 0, 1024)
    srd(e, 16, 10, 0, 512 * 3072 * 2)
    srd(e, 20, 6, WS_MOD, 3072 * 4)
    e('''v_lshrrev_b32 v1, 3, v0
    v_lshlrev_b32 v2, 5, v1
    buffer_load_dwordx4 v[4:7], v2, s[12:15], 0 offen
    buffer_load_dwordx4 v[8:11], v2, s[12:15], 0 offen offset:16
    s_mov_b32 s24, 98304
    v_mul_lo_u32 v2, v1, s24
    v_and_b32 v3, 7, v0
    v_lshl_add_u32 v2, v3, 4, v2
    s_lshl_b32 s24, s2, 7''')
    for i in range(16):
        e(f'buffer_load_dwordx4 v[{32+4*i}:{35+4*i}], v2, s[16:19], s24 offen\ns_add_u32 s24, s24, 6144')
    e('s_waitcnt vmcnt(16)')
    for i in range(8):
        unpack(e, 12 + 2 * i, 13 + 2 * i, 4 + i)
    for i in range(16):
        x = 12 + i
        e(f'''v_mul_f32 v28, 0xbfb8aa3b, v{x}
        v_exp_f32 v28, v28
        s_nop 0
        v_add_f32 v28, 1.0, v28
        v_rcp_f32 v28, v28
        s_nop 0
        v_mul_f32 v{x}, v{x}, v28
        v_cvt_pk_bf16_f32 v{x}, v{x}, v{x}
        v_lshlrev_b32 v{x}, 16, v{x}''')
    for j in range(8):
        e(f'v_mov_b32 v{4+j}, 0')
    for i in range(16):
        e(f's_waitcnt vmcnt({15-i})')
        for j in range(4):
            unpack(e, 28, 29, 32 + 4 * i + j)
            e(f'v_fmac_f32 v{4+2*j}, v28, v{12+i}\nv_fmac_f32 v{5+2*j}, v29, v{12+i}')
    e('''v_lshlrev_b32 v2, 5, v0
    ds_write_b128 v2, v[4:7]
    ds_write_b128 v2, v[8:11] offset:16
    s_waitcnt lgkmcnt(0)
    s_barrier
    v_cmp_gt_u32 vcc, 64, v0
    s_and_saveexec_b64 s[26:27], vcc
    s_cbranch_execz prep_end
    v_lshlrev_b32 v2, 2, v0''')
    for i in range(32):
        e(f'ds_read_b32 v{32+i}, v2 offset:{256*i}')
        if i % 8 == 7:
            e('s_waitcnt lgkmcnt(0)')
    for i in range(1, 32):
        e(f'v_add_f32 v32, v32, v{32+i}')
    e('''v_cvt_pk_bf16_f32 v32, v32, v32
    v_lshlrev_b32 v32, 16, v32
    s_lshr_b32 s24, s2, 3
    s_cmp_eq_u32 s24, 1
    s_cselect_b32 s25, 1.0, 0
    s_cmp_eq_u32 s24, 4
    s_cselect_b32 s25, 1.0, s25
    v_add_f32 v32, s25, v32
    v_cvt_pk_bf16_f32 v32, v32, v32
    v_lshlrev_b32 v32, 16, v32
    s_lshl_b32 s24, s2, 8
    buffer_store_dword v32, v2, s[20:23], s24 offen
    s_endpgm''')
    e.lab('prep_relayout')
    srd(e, 12, 4, 0, 2 * MB)
    srd(e, 16, 6, WS_CKV, 2 * MB)
    e('''s_sub_u32 s2, s2, 48
    v_and_b32 v1, 7, v0
    v_bfe_u32 v2, v0, 3, 1
    v_lshrrev_b32 v3, 4, v0
    v_lshlrev_b32 v4, 10, v1
    v_lshl_add_u32 v4, v2, 3, v4
    v_lshl_add_u32 v4, v3, 5, v4
    s_lshl_b32 s24, s2, 13
    buffer_load_dwordx2 v[8:9], v4, s[12:15], s24 offen
    buffer_load_dwordx2 v[10:11], v4, s[12:15], s24 offen offset:16
    buffer_load_dwordx2 v[12:13], v4, s[12:15], s24 offen offset:512
    buffer_load_dwordx2 v[14:15], v4, s[12:15], s24 offen offset:528
    v_lshlrev_b32 v5, 4, v1
    v_lshl_add_u32 v5, v2, 9, v5
    v_lshl_add_u32 v5, v3, 10, v5
    v_add_u32 v6, 0x4000, v5
    s_lshr_b32 s25, s2, 2
    s_lshl_b32 s25, s25, 15
    s_and_b32 s26, s2, 3
    s_lshl_b32 s26, s26, 7
    s_add_u32 s25, s25, s26
    s_waitcnt vmcnt(2)
    buffer_store_dwordx4 v[8:11], v5, s[16:19], s25 offen
    s_waitcnt vmcnt(1)
    buffer_store_dwordx4 v[12:15], v6, s[16:19], s25 offen''')
    if PF:
        srd(e, 12, 28, 0, 4 * MB)
        srd(e, 16, 30, 0, 4 * MB)
        e('v_lshlrev_b32 v1, 4, v0\ns_lshl_b32 s24, s2, 14')
        for i in range(4):
            e(f'buffer_load_dwordx4 v[16:19], v1, s[12:15], s24 offen\nbuffer_load_dwordx4 v[20:23], v1, s[16:19], s24 offen\ns_add_u32 s24, s24, 4096')
        e('s_waitcnt vmcnt(0)')
    e.lab('prep_end')
    e('s_endpgm')
    return kernel_desc('prep_kernel', 96, 32)

def ln2_kernel(e, nsplit):
    kernel_begin(e, 'ln2_kernel')
    e(f'''s_load_dwordx2 s[4:5], s[0:1], {KA['x']}
    s_load_dwordx2 s[6:7], s[0:1], {KA['ws']}
    s_cmp_ge_u32 s2, 256
    s_cbranch_scc1 ln2_end
    s_waitcnt lgkmcnt(0)''')
    srd(e, 12, 4, 0, 2 * MB)
    srd(e, 16, 6, WS_PART, nsplit * 2 * MB)
    srd(e, 20, 6, WS_MOD, 3072 * 4)
    srd(e, 24, 6, WS_X1, 2 * MB)
    srd(e, 28, 6, WS_H2, 2 * MB)
    e('''v_and_b32 v1, 7, v0
    v_bfe_u32 v2, v0, 3, 1
    v_lshrrev_b32 v3, 4, v0
    v_lshlrev_b32 v5, 4, v1
    v_lshl_add_u32 v5, v2, 9, v5
    v_lshl_add_u32 v5, v3, 10, v5
    v_add_u32 v6, 0x4000, v5
    s_lshr_b32 s33, s2, 2
    s_and_b32 s34, s2, 3
    s_lshl_b32 s34, s34, 7
    s_lshl_b32 s33, s33, 15
    s_add_u32 s33, s33, s34
    s_mov_b32 s35, s33''')
    P = 64
    R = 96
    for sp in range(nsplit):
        r = R + sp * 8
        e(f'buffer_load_dwordx4 v[{r}:{r+3}], v5, s[16:19], s35 offen\nbuffer_load_dwordx4 v[{r+4}:{r+7}], v6, s[16:19], s35 offen\ns_add_u32 s35, s35, {2*MB}')
    e('''v_lshlrev_b32 v4, 10, v1
    v_lshl_add_u32 v4, v2, 3, v4
    v_lshl_add_u32 v4, v3, 5, v4
    s_lshl_b32 s36, s2, 13
    buffer_load_dwordx2 v[8:9], v4, s[12:15], s36 offen
    buffer_load_dwordx2 v[10:11], v4, s[12:15], s36 offen offset:16
    buffer_load_dwordx2 v[12:13], v4, s[12:15], s36 offen offset:512
    buffer_load_dwordx2 v[14:15], v4, s[12:15], s36 offen offset:528
    v_lshlrev_b32 v4, 4, v2
    v_lshl_add_u32 v4, v3, 6, v4''')
    for base, idx in ((16, 2), (32, 4), (48, 3)):
        e(f's_mov_b32 s36, {idx*2048}')
        for q, off in enumerate((0, 32, 1024, 1056)):
            e(f'buffer_load_dwordx4 v[{base+4*q}:{base+4*q+3}], v4, s[20:23], s36 offen offset:{off}')
    e('s_waitcnt vmcnt(16)')
    for i in range(8):
        unpack(e, P + 2 * i, P + 2 * i + 1, R + i)
        for sp in range(1, nsplit):
            unpack(e, 80, 81, R + 8 * sp + i)
            e(f'v_add_f32 v{P+2*i}, v{P+2*i}, v80\nv_add_f32 v{P+2*i+1}, v{P+2*i+1}, v81')
    e('s_waitcnt vmcnt(8)')
    X = P + 16
    for i in range(8):
        unpack(e, X + 2 * i, X + 2 * i + 1, 8 + i)
    for i in range(16):
        e(f'v_fmac_f32 v{X+i}, v{P+i}, v{16+i}')
    for i in range(8):
        e(f'v_cvt_pk_bf16_f32 v{8+i}, v{X+2*i}, v{X+2*i+1}')
    e('buffer_store_dwordx4 v[8:11], v5, s[24:27], s33 offen\nbuffer_store_dwordx4 v[12:15], v6, s[24:27], s33 offen')
    for i in range(8):
        unpack(e, X + 2 * i, X + 2 * i + 1, 8 + i)
    e('s_waitcnt vmcnt(2)')
    layernorm_rows(e, [X + i for i in range(16)], 4, 0, P, 0, [32 + i for i in range(16)], [48 + i for i in range(16)])
    for i in range(8):
        e(f'v_cvt_pk_bf16_f32 v{24+i}, v{X+2*i}, v{X+2*i+1}')
    e('buffer_store_dwordx4 v[24:27], v5, s[28:31], s33 offen\nbuffer_store_dwordx4 v[28:31], v6, s[28:31], s33 offen')
    e.lab('ln2_end')
    e('s_endpgm')
    return kernel_desc('ln2_kernel', R + 8 * nsplit, 40)
```

```python
from common import *

def prep_kernel(e):
    kernel_begin(e, 'prep_kernel')
    e(f'''s_load_dwordx2 s[4:5], s[0:1], {KA['ckv']}
    s_load_dwordx4 s[8:11], s[0:1], {KA['c']}
    s_load_dwordx2 s[6:7], s[0:1], {KA['ws']}
    s_load_dwordx4 s[28:31], s[0:1], {KA['wuk']}
    s_cmp_ge_u32 s2, 352
    s_cbranch_scc1 prep_end
    s_waitcnt lgkmcnt(0)
    s_cmp_ge_u32 s2, 96
    s_cbranch_scc1 prep_relayout''')
    srd(e, 12, 8, 0, 1024)
    srd(e, 16, 10, 0, 512 * 3072 * 2)
    srd(e, 20, 6, WS_MOD, 3072 * 4)
    e('''v_lshrrev_b32 v1, 2, v0
    v_lshlrev_b32 v2, 4, v1
    buffer_load_dwordx4 v[4:7], v2, s[12:15], 0 offen
    v_mul_u32_u24 v2, 49152, v1
    v_and_b32 v3, 3, v0
    v_lshl_add_u32 v2, v3, 4, v2
    s_lshl_b32 s24, s2, 6''')
    for i in range(8):
        e(f'buffer_load_dwordx4 v[{32+4*i}:{35+4*i}], v2, s[16:19], s24 offen\ns_add_u32 s24, s24, 6144')
    e('s_waitcnt vmcnt(8)')
    for i in range(4):
        unpack(e, 12 + 2 * i, 13 + 2 * i, 4 + i)
    for i in range(8):
        x = 12 + i
        e(f'''v_mul_f32 v28, 0xbfb8aa3b, v{x}
        v_exp_f32 v28, v28
        s_nop 0
        v_add_f32 v28, 1.0, v28
        v_rcp_f32 v28, v28
        s_nop 0
        v_mul_f32 v{x}, v{x}, v28
        v_cvt_pk_bf16_f32 v{x}, v{x}, v{x}
        v_lshlrev_b32 v{x}, 16, v{x}''')
    for j in range(8):
        e(f'v_mov_b32 v{4+j}, 0')
    for i in range(8):
        e(f's_waitcnt vmcnt({7-i})')
        for j in range(4):
            unpack(e, 28, 29, 32 + 4 * i + j)
            e(f'v_fmac_f32 v{4+2*j}, v28, v{12+i}\nv_fmac_f32 v{5+2*j}, v29, v{12+i}')
    e('''v_lshlrev_b32 v2, 5, v0
    ds_write_b128 v2, v[4:7]
    ds_write_b128 v2, v[8:11] offset:16
    v_readfirstlane_b32 s26, v0
    s_waitcnt lgkmcnt(0)
    s_barrier
    s_cmp_lg_u32 s26, 0
    s_cbranch_scc1 prep_end
    v_and_b32 v2, 31, v0
    v_lshlrev_b32 v2, 2, v2
    v_lshrrev_b32 v3, 5, v0
    v_lshl_add_u32 v3, v3, 12, v2''')
    for i in range(16):
        e(f'ds_read2_b32 v[{32+2*i}:{33+2*i}], v3 offset0:{(64*i) % 256} offset1:{(64*i+32) % 256}')
        if i % 4 == 3:
            e('v_add_u32 v3, 1024, v3')
        if i % 8 == 7:
            e('s_waitcnt lgkmcnt(0)')
    for i in range(2, 32, 2):
        e(f'v_add_f32 v32, v32, v{32+i}\nv_add_f32 v33, v33, v{33+i}')
    e('''v_add_f32 v32, v32, v33
    v_mov_b32 v33, v32
    s_nop 1
    v_permlane32_swap_b32 v33, v32
    s_nop 1
    v_add_f32 v32, v32, v33
    v_cvt_pk_bf16_f32 v32, v32, v32
    v_lshlrev_b32 v32, 16, v32
    s_lshr_b32 s24, s2, 4
    s_cmp_eq_u32 s24, 1
    s_cselect_b32 s25, 1.0, 0
    s_cmp_eq_u32 s24, 4
    s_cselect_b32 s25, 1.0, s25
    v_add_f32 v32, s25, v32
    v_cvt_pk_bf16_f32 v32, v32, v32
    v_lshlrev_b32 v32, 16, v32
    s_lshl_b32 s24, s2, 7
    buffer_store_dword v32, v2, s[20:23], s24 offen
    s_endpgm''')
    e.lab('prep_relayout')
    e(f's_load_dwordx2 s[40:41], s[0:1], {KA["x"]}\ns_load_dwordx2 s[42:43], s[0:1], {KA["out"]}')
    srd(e, 12, 4, 0, 2 * MB)
    srd(e, 16, 6, WS_CKV, 2 * MB)
    e('''s_sub_u32 s2, s2, 96
    v_and_b32 v1, 7, v0
    v_bfe_u32 v2, v0, 3, 1
    v_lshrrev_b32 v3, 4, v0
    v_lshlrev_b32 v4, 10, v1
    v_lshl_add_u32 v4, v2, 3, v4
    v_lshl_add_u32 v4, v3, 5, v4
    s_lshl_b32 s24, s2, 13
    buffer_load_dwordx2 v[8:9], v4, s[12:15], s24 offen
    buffer_load_dwordx2 v[10:11], v4, s[12:15], s24 offen offset:16
    buffer_load_dwordx2 v[12:13], v4, s[12:15], s24 offen offset:512
    buffer_load_dwordx2 v[14:15], v4, s[12:15], s24 offen offset:528
    v_lshlrev_b32 v5, 4, v1
    v_lshl_add_u32 v5, v2, 9, v5
    v_lshl_add_u32 v5, v3, 10, v5
    v_add_u32 v6, 0x4000, v5
    s_lshr_b32 s25, s2, 2
    s_lshl_b32 s25, s25, 15
    s_and_b32 s26, s2, 3
    s_lshl_b32 s26, s26, 7
    s_add_u32 s25, s25, s26
''')
    srd(e, 32, 28, 0, 4 * MB)
    srd(e, 36, 30, 0, 4 * MB)
    e('v_lshlrev_b32 v1, 4, v0\ns_lshl_b32 s24, s2, 14')
    for i in range(4):
        e(f'buffer_load_dwordx4 v[16:19], v1, s[32:35], s24 offen\nbuffer_load_dwordx4 v[20:23], v1, s[36:39], s24 offen\ns_add_u32 s24, s24, 4096')
    n = 8
    CPF = int(os.environ.get('CPF', '1')); TPF = int(os.environ.get('TPF', '1')); XPF = int(os.environ.get('XPF', '1'))
    e('s_lshr_b32 s27, s2, 3')
    if CPF:
        e('''s_lshl_b32 s24, s27, 12
        s_min_u32 s24, s24, code_end-kv_kernel-4096
        s_getpc_b64 s[44:45]''')
        e.lab('cpf_pc')
        e('''s_add_u32 s44, s44, s24
        s_addc_u32 s45, s45, 0
        s_add_u32 s44, s44, kv_kernel-cpf_pc
        s_addc_u32 s45, s45, 0
        global_load_dwordx4 v[24:27], v1, s[44:45]''')
        n += 1
    e('s_waitcnt lgkmcnt(0)')
    if XPF:
        srd(e, 32, 40, 0, 2 * MB)
        e('''s_lshl_b32 s24, s2, 13
        buffer_load_dwordx4 v[16:19], v1, s[32:35], s24 offen
        s_add_u32 s24, s24, 4096
        buffer_load_dwordx4 v[20:23], v1, s[32:35], s24 offen''')
        n += 2
    if TPF:
        srd(e, 36, 42, 0, 2 * MB)
        srd(e, 44, 6, 0, 256 * MB)
        e('''s_lshl_b32 s24, s27, 16
        buffer_load_dword v28, off, s[36:39], s24
        s_lshl_b32 s24, s27, 21
        buffer_load_dword v29, off, s[44:47], s24
        s_add_u32 s24, s24, 0x4000000
        buffer_load_dword v30, off, s[44:47], s24''')
        n += 3
    e(f'''s_waitcnt vmcnt({n})
    buffer_store_dwordx4 v[8:11], v5, s[16:19], s25 offen
    buffer_store_dwordx4 v[12:15], v6, s[16:19], s25 offen
    s_waitcnt vmcnt(0)''')
    e.lab('prep_end')
    e('s_endpgm')
    return kernel_desc('prep_kernel', 96, 48)

def ln2_kernel(e, nsplit):
    kernel_begin(e, 'ln2_kernel')
    e(f'''s_load_dwordx2 s[4:5], s[0:1], {KA['x']}
    s_load_dwordx2 s[6:7], s[0:1], {KA['ws']}
    s_cmp_ge_u32 s2, 256
    s_cbranch_scc1 ln2_end
    s_waitcnt lgkmcnt(0)''')
    srd(e, 12, 4, 0, 2 * MB)
    srd(e, 16, 6, WS_PART, nsplit * 2 * MB)
    srd(e, 20, 6, WS_MOD, 3072 * 4)
    srd(e, 24, 6, WS_X1, 2 * MB)
    srd(e, 28, 6, WS_H2, 2 * MB)
    e('''v_and_b32 v1, 7, v0
    v_bfe_u32 v2, v0, 3, 1
    v_lshrrev_b32 v3, 4, v0
    v_lshlrev_b32 v5, 4, v1
    v_lshl_add_u32 v5, v2, 9, v5
    v_lshl_add_u32 v5, v3, 10, v5
    v_add_u32 v6, 0x4000, v5
    s_lshr_b32 s33, s2, 2
    s_and_b32 s34, s2, 3
    s_lshl_b32 s34, s34, 7
    s_lshl_b32 s33, s33, 15
    s_add_u32 s33, s33, s34
    s_mov_b32 s35, s33''')
    P = 64
    R = 96
    for sp in range(nsplit):
        r = R + sp * 8
        e(f'buffer_load_dwordx4 v[{r}:{r+3}], v5, s[16:19], s35 offen\nbuffer_load_dwordx4 v[{r+4}:{r+7}], v6, s[16:19], s35 offen\ns_add_u32 s35, s35, {2*MB}')
    e('''v_lshlrev_b32 v4, 10, v1
    v_lshl_add_u32 v4, v2, 3, v4
    v_lshl_add_u32 v4, v3, 5, v4
    s_lshl_b32 s36, s2, 13
    buffer_load_dwordx2 v[8:9], v4, s[12:15], s36 offen
    buffer_load_dwordx2 v[10:11], v4, s[12:15], s36 offen offset:16
    buffer_load_dwordx2 v[12:13], v4, s[12:15], s36 offen offset:512
    buffer_load_dwordx2 v[14:15], v4, s[12:15], s36 offen offset:528
    v_lshlrev_b32 v4, 4, v2
    v_lshl_add_u32 v4, v3, 6, v4''')
    for base, idx in ((16, 2), (32, 4), (48, 3)):
        e(f's_mov_b32 s36, {idx*2048}')
        for q, off in enumerate((0, 32, 1024, 1056)):
            e(f'buffer_load_dwordx4 v[{base+4*q}:{base+4*q+3}], v4, s[20:23], s36 offen offset:{off}')
    e('s_waitcnt vmcnt(16)')
    for i in range(8):
        unpack(e, P + 2 * i, P + 2 * i + 1, R + i)
        for sp in range(1, nsplit):
            unpack(e, 80, 81, R + 8 * sp + i)
            e(f'v_add_f32 v{P+2*i}, v{P+2*i}, v80\nv_add_f32 v{P+2*i+1}, v{P+2*i+1}, v81')
    e('s_waitcnt vmcnt(0)')
    X = P + 16
    for i in range(8):
        unpack(e, X + 2 * i, X + 2 * i + 1, 8 + i)
    for i in range(16):
        e(f'v_fmac_f32 v{X+i}, v{P+i}, v{16+i}')
    for i in range(8):
        e(f'v_cvt_pk_bf16_f32 v{8+i}, v{X+2*i}, v{X+2*i+1}')
    e('buffer_store_dwordx4 v[8:11], v5, s[24:27], s33 offen\nbuffer_store_dwordx4 v[12:15], v6, s[24:27], s33 offen')
    for i in range(8):
        unpack(e, X + 2 * i, X + 2 * i + 1, 8 + i)
    layernorm_rows(e, [X + i for i in range(16)], 4, 0, P, 0, [32 + i for i in range(16)], [48 + i for i in range(16)])
    for i in range(8):
        e(f'v_cvt_pk_bf16_f32 v{24+i}, v{X+2*i}, v{X+2*i+1}')
    e('buffer_store_dwordx4 v[24:27], v5, s[28:31], s33 offen\nbuffer_store_dwordx4 v[28:31], v6, s[28:31], s33 offen')
    e.lab('ln2_end')
    e('s_endpgm')
    return kernel_desc('ln2_kernel', R + 8 * nsplit, 40)
```

```python
MB = 1 << 20
WS_MOD = 0
WS_CKV = 1 * MB
WS_H1 = 3 * MB
WS_H2 = 5 * MB
WS_X1 = 7 * MB
WS_HH = 9 * MB
WS_K = 16 * MB
WS_V = 32 * MB
WS_CTX = 48 * MB
WS_PART = 64 * MB
KA = dict(x=0, ckv=8, wq=16, wuk=24, wuv=32, wo=40, bx=48, wg=56, wu=64, wd=72, c=80, wmod=88, out=96, dbg=104, ws=112)

class E:
    def __init__(self):
        self.l = []
        self.n = 0
    def __call__(self, s):
        for x in s.strip().split('\n'):
            self.l.append('    ' + x.strip())
    def lab(self, s):
        self.l.append(s + ':')
    def uniq(self, p):
        self.n += 1
        return f'{p}_{self.n}'
    def text(self):
        return '\n'.join(self.l) + '\n'

def v(a, n=1):
    return f'v{a}' if n == 1 else f'v[{a}:{a+n-1}]'
def s(a, n=1):
    return f's{a}' if n == 1 else f's[{a}:{a+n-1}]'

def srd(e, d, base, off, size):
    if off:
        e(f's_add_u32 s{d}, s{base}, {off}\ns_addc_u32 s{d+1}, s{base+1}, 0')
    else:
        e(f's_mov_b32 s{d}, s{base}\ns_mov_b32 s{d+1}, s{base+1}')
    e(f's_mov_b32 s{d+2}, {size}\ns_mov_b32 s{d+3}, 0x00020000')

def kernel_begin(e, name):
    e.l.append(f'.text\n.globl {name}\n.p2align 8\n.type {name},@function\n{name}:')

def kernel_desc(name, nv, ns=102):
    acc = (nv + 3) // 4 * 4
    return f'''.section .rodata,"a"
.p2align 6
.amdhsa_kernel {name}
  .amdhsa_next_free_vgpr {nv}
  .amdhsa_next_free_sgpr {ns}
  .amdhsa_accum_offset {acc}
  .amdhsa_group_segment_fixed_size 0
  .amdhsa_kernarg_size 120
  .amdhsa_user_sgpr_count 2
  .amdhsa_user_sgpr_kernarg_segment_ptr 1
  .amdhsa_system_sgpr_workgroup_id_x 1
.end_amdhsa_kernel
'''

def unpack(e, lo, hi, src):
    e(f'v_and_b32 v{hi}, 0xffff0000, v{src}\nv_lshlrev_b32 v{lo}, 16, v{src}')

def layernorm_rows(e, xs, nw, lds_off, vt, vtid, sc, sh):
    a, c, b, d, R = vt, vt + 1, vt + 2, vt + 3, vt + 4
    e(f'v_add_f32 v{a}, v{xs[0]}, v{xs[1]}\nv_mul_f32 v{c}, v{xs[0]}, v{xs[0]}\nv_fmac_f32 v{c}, v{xs[1]}, v{xs[1]}')
    for x in xs[2:]:
        e(f'v_add_f32 v{a}, v{a}, v{x}\nv_fmac_f32 v{c}, v{x}, v{x}')
    e(f'''s_nop 1
    v_add_f32_dpp v{a}, v{a}, v{a} row_ror:8 row_mask:0xf bank_mask:0xf
    v_add_f32_dpp v{c}, v{c}, v{c} row_ror:8 row_mask:0xf bank_mask:0xf''')
    for op in ('v_permlane16_swap_b32', 'v_permlane32_swap_b32'):
        e(f'''v_mov_b32 v{b}, v{a}
        v_mov_b32 v{d}, v{c}
        s_nop 1
        {op} v{b}, v{a}
        {op} v{d}, v{c}
        s_nop 1
        v_add_f32 v{a}, v{a}, v{b}
        v_add_f32 v{c}, v{c}, v{d}''')
    e(f'''v_and_b32 v{b}, 7, v{vtid}
    v_mul_u32_u24 v{b}, {nw*8}, v{b}
    v_lshrrev_b32 v{d}, 6, v{vtid}
    v_lshl_add_u32 v{d}, v{d}, 3, v{b}
    ds_write_b64 v{d}, v[{a}:{c}] offset:{lds_off}
    s_waitcnt lgkmcnt(0)
    s_barrier''')
    for i in range(nw // 2):
        e(f'ds_read_b128 v[{R+4*i}:{R+4*i+3}], v{b} offset:{lds_off+16*i}')
    e(f's_waitcnt lgkmcnt(0)\nv_add_f32 v{a}, v{R}, v{R+2}\nv_add_f32 v{c}, v{R+1}, v{R+3}')
    for i in range(2, nw):
        e(f'v_add_f32 v{a}, v{a}, v{R+2*i}\nv_add_f32 v{c}, v{c}, v{R+2*i+1}')
    e(f'''v_mul_f32 v{a}, 0x3b000000, v{a}
    v_mul_f32 v{c}, 0x3b000000, v{c}
    v_fma_f32 v{c}, -v{a}, v{a}, v{c}
    v_max_f32 v{c}, 0, v{c}
    v_add_f32 v{c}, 0x3727c5ac, v{c}
    v_rsq_f32 v{c}, v{c}''')
    for x, p, q in zip(xs, sc, sh):
        e(f'v_sub_f32 v{x}, v{x}, v{a}\nv_mul_f32 v{p}, v{p}, v{c}\nv_fma_f32 v{x}, v{x}, v{p}, v{q}')

import os
PF = int(os.environ.get('PF', '1'))
TICK = bool(os.environ.get('TICK'))
def tick(e, i):
    if TICK:
        e(f's_memtime s[{70+4*i}:{71+4*i}]\ns_memrealtime s[{72+4*i}:{73+4*i}]\ns_waitcnt lgkmcnt(0)')
KIDX = {}
def tick_store(e, n, k):
    if not TICK: return
    l = e.uniq('tk')
    e(f's_cmp_lg_u32 s40, 0\ns_cbranch_scc1 {l}\ns_lshl_b32 s3, s2, 6')
    srd(e, 96, 6, 200 * MB + k * 65536, 65536)
    e('v_mov_b32 v2, 0')
    for i in range(n):
        e(f'v_mov_b32 v4, s{70+4*i}\nv_mov_b32 v5, s{72+4*i}\nbuffer_store_dwordx2 v[4:5], v2, s[96:99], s3 offen offset:{8*i}\ns_nop 1')
    e('s_waitcnt vmcnt(0)')
    e.lab(l)

OPF = int(os.environ.get('OPF', '0'))
def code_pf(e, name, end, vr, sr=64):
    if not OPF: return
    e(f's_getpc_b64 s[{sr}:{sr+1}]')
    e.lab(f'{name}_pc')
    e(f'''v_lshlrev_b32 v{vr}, 5, v0
    v_min_u32 v{vr}, {end}-{name}_pc, v{vr}
    global_load_dword v{vr+1}, v{vr}, s[{sr}:{sr+1}]''')
```

```python
from common import *

def interleave(main, extra):
    out = []
    n, m = len(main), len(extra)
    for i, x in enumerate(main):
        out.append(x)
        out += [extra[k] for k in range(m) if k * n // m == i]
    return out

class G:
    def __init__(s, NW, WC, TR, RT, KS, NP, NS, nst, ld, wtiles, base=0, vb=0, U=1):
        s.__dict__.update(locals())
        s.BK = KS * 16
        s.ACT = RT * KS * 1024
        s.PAN = s.BK * 128
        s.STG = s.ACT + NP * s.PAN
        s.na = RT * KS // NW
        s.nwd = NP * (s.BK // 8) // NW
        s.L = s.na + s.nwd
        s.TC = len(wtiles)
        s.lds = base + NS * s.STG
        s.F = 12
        s.F1 = (TR + s.TC) * 4
        s.FS = s.F1 * U
        s.ACC = s.F + 2 * s.FS
        s.NV = s.ACC + TR * s.TC * 16
    def acc(s, tr, tc):
        return s.ACC + (tr * s.TC + tc) * 16
    def setup(s, e, wpan):
        lg = {1: 0, 2: 1, 4: 2, 8: 3}
        e(f'''v_and_b32 v1, 63, v0
        v_lshrrev_b32 v2, 6, v0
        s_nop 0
        v_readfirstlane_b32 s40, v2
        v_lshrrev_b32 v8, 3, v1
        v_and_b32 v9, 7, v1
        v_bfe_u32 v10, v1, 4, 1
        v_lshrrev_b32 v11, 2, v9
        v_xor_b32 v10, v10, v11
        v_and_b32 v9, 3, v9
        v_mul_u32_u24 v8, {s.ld}, v8
        v_lshl_add_u32 v8, v10, 6, v8
        v_lshl_add_u32 v8, v9, 4, v8
        s_lshr_b32 s41, s40, {lg[s.WC]}
        s_and_b32 s42, s40, {s.WC - 1}
        v_lshrrev_b32 v4, 5, v1
        v_lshlrev_b32 v4, 9, v4
        v_bfe_u32 v5, v1, 2, 2
        v_lshl_add_u32 v4, v5, 7, v4
        v_bfe_u32 v5, v1, 4, 1
        v_lshl_add_u32 v4, v5, 5, v4
        v_and_b32 v5, 3, v1
        v_lshl_add_u32 v4, v5, 3, v4
        v_bfe_u32 v5, v1, 3, 1
        v_lshl_add_u32 v4, v5, 6, v4
        v_lshlrev_b32 v1, 4, v1
        s_mul_i32 s43, s41, {s.TR * s.KS * 1024}
        s_add_u32 s43, s43, {s.vb}
        v_add_u32 v2, s43, v1
        v_add_u32 v3, 0x10000, v2
        v_add_u32 v4, {s.vb}, v4''')
        if wpan:
            e(wpan + '\nv_add_u32 v4, s43, v4')
        e('v_xor_b32 v6, 64, v4\nv_add_u32 v5, 0x10000, v4\nv_add_u32 v7, 0x10000, v6')
        for i in range(1, s.nwd):
            e(f'v_add_u32 v{8+i}, {i * (8 * s.ld - 1024)}, v8')
        e(f's_mul_i32 s44, s40, {s.na * 1024}\ns_mul_i32 s45, s40, {s.nwd * 1024}\ns_add_u32 s45, s45, {s.ACT + s.vb}\ns_add_u32 s44, s44, {s.vb}')
    def dma(s, st):
        b = s.base + (st % s.NS) * s.STG
        o = []
        for i in range(s.na):
            pre = f's_add_u32 m0, s44, {b}\ns_nop 0\n' if i == 0 else ''
            post = f'\ns_add_u32 s46, s46, {s.KS * 1024}\ns_cmp_eq_u32 s46, s60\ns_cselect_b32 s46, s62, s46' if i == s.na - 1 else ''
            o.append(pre + f'buffer_load_dwordx4 v1, s[12:15], s46 offen offset:{i*1024} lds' + post)
        for i in range(s.nwd):
            pre = f's_add_u32 m0, s45, {b}\ns_nop 0\n' if i == 0 else ''
            post = f'\ns_add_u32 s47, s47, {s.BK * s.ld}\ns_cmp_eq_u32 s47, s61\ns_cselect_b32 s47, s63, s47' if i == s.nwd - 1 else ''
            o.append(pre + f'buffer_load_dwordx4 v{8+i}, s[16:19], s47 offen offset:{i*1024} lds' + post)
        return o
    def rd(s, op, d, n, a, off):
        if off >= 65536:
            a += 1; off -= 65536
        return f'{op} {v(d, n)}, v{a} offset:{off}'
    def reads(s, st, kg, fs):
        return sum([s.reads1(st, kg * s.U + u, s.F + fs * s.FS + u * s.F1) for u in range(s.U)], [])
    def reads1(s, st, ks, f):
        b = s.base + (st % s.NS) * s.STG
        o = []
        for tc, (j, po) in enumerate(s.wtiles):
            for h in range(2):
                o.append(s.rd('ds_read_b64_tr_b16', f + (s.TR + tc) * 4 + 2 * h, 2, 4 + 2 * j, b + s.ACT + po + ks * 2048 + h * 1024))
            if tc == 0:
                o.append(s.rd('ds_read_b128', f, 4, 2, b + ks * 1024))
        for tr in range(1, s.TR):
            o.append(s.rd('ds_read_b128', f + tr * 4, 4, 2, b + (tr * s.KS + ks) * 1024))
        return o
    def mfmas(s, fs, mode, first=False):
        return sum([s.mfmas1(s.F + fs * s.FS + u * s.F1, mode, first and u == 0) for u in range(s.U)], [])
    def mfmas1(s, f, mode, first):
        o = []
        for tr in range(s.TR):
            for tc in range(s.TC):
                a, w = v(f + tr * 4, 4), v(f + (s.TR + tc) * 4, 4)
                if mode == 'AW':
                    a, w = w, a
                c = v(s.acc(tr, tc), 16)
                o.append(f'v_mfma_f32_32x32x16_bf16 {c}, {w}, {a}, {"0" if first else c}')
        return o
    def prologue(s, e, rot):
        e(rot + f'''
        s_mov_b32 s62, s46
        s_mov_b32 s63, s47
        s_add_u32 s60, s46, {s.nst * s.KS * 1024}
        s_add_u32 s61, s47, {s.nst * s.BK * s.ld}
        s_mul_i32 s65, s64, {s.KS * 1024}
        s_add_u32 s46, s46, s65
        s_mul_i32 s65, s64, {s.BK * s.ld}
        s_add_u32 s47, s47, s65''')
        for st in range(s.NS):
            for x in s.dma(st):
                e(x)
    def loop(s, e, mode, extra={}):
        xc = 0
        R = len(s.reads(0, 0, 0))
        e(f's_waitcnt vmcnt({(s.NS - 1) * s.L})\ns_barrier')
        tick(e, 1)
        for x in s.reads(0, 0, 0): e(x)
        fs = 0
        for st in range(s.nst):
            for ks in range(s.KS // s.U - 1):
                for x in s.reads(st, ks + 1, fs ^ 1): e(x)
                e(f's_waitcnt lgkmcnt({R})')
                for x in s.mfmas(fs, mode, st == 0 and ks == 0): e(x)
                fs ^= 1
            if st + 1 < s.nst:
                pend = min(s.NS - 2, s.nst - st - 2)
                e(f's_waitcnt vmcnt({pend * s.L + xc}) lgkmcnt(0)\ns_barrier')
                for x in s.reads(st + 1, 0, fs ^ 1): e(x)
            else:
                e('s_waitcnt lgkmcnt(0)')
            d = s.dma(st + s.NS) if st + s.NS < s.nst else []
            d = d + extra.get(st, []); xc += len(extra.get(st, []))
            for x in interleave(s.mfmas(fs, mode, st == 0 and s.KS == s.U), d): e(x)
            fs ^= 1
        e('s_nop 7\ns_nop 7')
        tick(e, 2)

ROT16 = 's_mov_b32 s64, 0'
def ROT2(h):
    return f's_lshr_b32 s64, s2, 3\ns_lshr_b32 s65, s2, 5\ns_add_u32 s64, s64, s65\ns_and_b32 s64, s64, 1\ns_mul_i32 s64, s64, {h}'
def pack(e, d, a, n=16):
    for i in range(n // 2):
        e(f'v_cvt_pk_bf16_f32 v{d+i}, v{a+2*i}, v{a+2*i+1}')

def kv_kernel(e):
    g = G(8, 4, 4, 8, 2, 4, 4, 16, 8192, [(0, 0), (1, 0)], base=1024)
    kernel_begin(e, 'kv_kernel')
    tick(e, 0)
    e(f'''s_load_dwordx2 s[4:5], s[0:1], {KA['x']}
    s_load_dwordx4 s[8:11], s[0:1], {KA['wuk']}
    s_load_dwordx2 s[56:57], s[0:1], {KA['wq']}
    s_load_dwordx2 s[6:7], s[0:1], {KA['ws']}
    s_cmp_ge_u32 s2, 256
    s_cbranch_scc1 kv_end''')
    code_pf(e, 'kv', 'kv_end', g.ACC + 2)
    e(f'''    s_and_b32 s33, s2, 7
    s_lshl_b32 s33, s33, 1
    s_bfe_u32 s34, s2, 0x10003
    s_add_u32 s33, s33, s34
    s_and_b32 s34, s2, 16
    s_add_u32 s33, s33, s34
    s_lshr_b32 s34, s2, 5''')
    g.setup(e, f's_mul_i32 s43, s42, {g.PAN}')
    e('''s_waitcnt lgkmcnt(0)
    s_cmp_ge_u32 s33, 16
    s_cselect_b32 s8, s10, s8
    s_cselect_b32 s9, s11, s9
    s_and_b32 s35, s33, 15''')
    srd(e, 12, 6, WS_CKV, 2 * MB)
    srd(e, 16, 8, 0, 4 * MB)
    srd(e, 20, 4, 0, 2 * MB)
    srd(e, 24, 6, WS_MOD, 3072 * 4)
    srd(e, 28, 6, WS_H1, 2 * MB)
    A = g.NV
    e(f'''s_lshl_b32 s46, s34, 3
    s_add_u32 s46, s46, s40
    s_lshl_b32 s46, s46, 15
    s_lshr_b32 s47, s40, 1
    s_lshl_b32 s47, s47, 7
    s_and_b32 s36, s40, 1
    s_lshl_b32 s36, s36, 17
    s_add_u32 s47, s47, s36
    s_lshl_b32 s36, s35, 9
    s_add_u32 s47, s47, s36''')
    g.prologue(e, ROT16)
    e(f'''v_and_b32 v{A}, 7, v0
    v_bfe_u32 v{A+1}, v0, 3, 1
    v_lshrrev_b32 v{A+2}, 4, v0
    v_lshlrev_b32 v{A+4}, 10, v{A}
    v_lshl_add_u32 v{A+4}, v{A+1}, 3, v{A+4}
    v_lshl_add_u32 v{A+4}, v{A+2}, 5, v{A+4}
    s_lshl_b32 s38, s2, 13
    s_mov_b32 s58, 0x400000
    s_mov_b32 s59, 0x00020000
    s_lshl_b32 s66, s2, 14
    s_lshl_b32 s67, s40, 11
    s_add_u32 s66, s66, s67
    v_lshlrev_b32 v{A+5}, 4, v{A+1}
    v_lshl_add_u32 v{A+5}, v{A+2}, 6, v{A+5}
    v_lshlrev_b32 v{A+3}, 4, v{A}
    v_lshl_add_u32 v{A+3}, v{A+1}, 9, v{A+3}
    v_lshl_add_u32 v{A+3}, v{A+2}, 10, v{A+3}
    s_lshr_b32 s39, s2, 2
    s_lshl_b32 s39, s39, 15
    s_and_b32 s37, s2, 3
    s_lshl_b32 s37, s37, 7
    s_add_u32 s39, s39, s37
    s_lshl_b32 s36, s35, 1
    s_lshr_b32 s37, s42, 1
    s_add_u32 s36, s36, s37
    s_lshl_b32 s36, s36, 19
    s_lshl_b32 s37, s34, 16
    s_add_u32 s36, s36, s37
    s_lshl_b32 s37, s41, 15
    s_add_u32 s36, s36, s37
    s_and_b32 s37, s42, 1
    s_cmp_ge_u32 s33, 16
    s_cbranch_scc1 kv_v
    s_lshl_b32 s37, s37, 12
    s_add_u32 s36, s36, s37''')
    X = {12: [f'buffer_load_dwordx2 v[{A+8}:{A+9}], v{A+4}, s[20:23], s38 offen', f'buffer_load_dwordx2 v[{A+10}:{A+11}], v{A+4}, s[20:23], s38 offen offset:16'] +
         [f'buffer_load_dwordx4 {v(A+16+4*i,4)}, v{A+5}, s[24:27], 0 offen offset:{o}' for i, o in enumerate((0, 32, 2048, 2080))]}
    if PF:
        X[11] = [f'buffer_load_dwordx4 {v(A+12,4)}, v1, s[56:59], s66 offen offset:{o}' for o in (0, 1024)]
    srd(e, 52, 6, WS_K, 16 * MB)
    g.loop(e, 'WA', X)
    e('s_waitcnt vmcnt(0)')
    for tr in range(4):
        for tc in range(2):
            d = g.F + ((tr * 2 + tc) % 4) * 8
            pack(e, d, g.acc(tr, tc))
            e(f'buffer_store_dwordx4 {v(d,4)}, v1, s[52:55], s36 offen offset:{tc*2048}\nbuffer_store_dwordx4 {v(d+4,4)}, v1, s[52:55], s36 offen offset:{tc*2048+1024}')
        e('s_add_u32 s36, s36, 8192')
    e('s_branch kv_ln')
    e.lab('kv_v')
    e('s_lshl_b32 s37, s37, 13\ns_add_u32 s36, s36, s37')
    srd(e, 52, 6, WS_V, 16 * MB)
    g.loop(e, 'AW', X)
    e('s_waitcnt vmcnt(0)')
    i = 0
    for t2 in range(2):
        for tc in range(2):
            for t1 in range(2):
                d = g.F + (i % 4) * 8; i += 1
                pack(e, d, g.acc(t2 * 2 + t1, tc))
                e(f'buffer_store_dwordx4 {v(d,4)}, v1, s[52:55], s36 offen offset:{t1*2048}\nbuffer_store_dwordx4 {v(d+4,4)}, v1, s[52:55], s36 offen offset:{t1*2048+1024}')
            e(f's_add_u32 s36, s36, {4096 if tc == 0 else 16384 - 4096}')
    e.lab('kv_ln')
    for i in range(4):
        unpack(e, A + 32 + 2 * i, A + 33 + 2 * i, A + 8 + i)
    layernorm_rows(e, [A + 32 + i for i in range(8)], 8, 0, A + 40, 0, [A + 24 + i for i in range(8)], [A + 16 + i for i in range(8)])
    pack(e, A + 8, A + 32, 8)
    e(f'buffer_store_dwordx4 v[{A+8}:{A+11}], v{A+3}, s[28:31], s39 offen')
    if TICK: e('s_waitcnt vmcnt(0)')
    tick(e, 3)
    tick_store(e, 4, 1)
    e.lab('kv_end')
    e('s_endpgm')
    return kernel_desc('kv_kernel', A + 60), g.lds

def op_kernel(e):
    g = G(8, 2, 1, 4, 4, 2, 4, 16, 1024, [(0, 0), (1, 0)], U=2)
    kernel_begin(e, 'op_kernel')
    tick(e, 0)
    e(f'''s_load_dwordx2 s[8:9], s[0:1], {KA['wo']}
    s_load_dwordx2 s[6:7], s[0:1], {KA['ws']}
    s_cmp_ge_u32 s2, 256
    s_cbranch_scc1 op_end''')
    code_pf(e, 'op', 'op_end', g.ACC + 2)
    e(f'''    s_bfe_u32 s33, s2, 0x20001
    s_and_b32 s34, s2, 1
    s_lshl_b32 s34, s34, 3
    s_lshr_b32 s35, s2, 5
    s_add_u32 s34, s34, s35
    s_bfe_u32 s35, s2, 0x20003''')
    g.setup(e, f's_mul_i32 s43, s42, {g.PAN}')
    e('s_waitcnt lgkmcnt(0)')
    srd(e, 12, 6, WS_CTX, 16 * MB)
    srd(e, 16, 8, 0, 4 * MB)
    srd(e, 20, 6, WS_PART, 8 * MB)
    e('''s_lshl_b32 s46, s34, 2
    s_add_u32 s46, s46, s41
    s_lshl_b32 s46, s46, 18
    s_lshl_b32 s36, s33, 16
    s_add_u32 s46, s46, s36
    s_lshl_b32 s36, s42, 11
    s_add_u32 s46, s46, s36
    s_lshr_b32 s47, s40, 2
    s_lshl_b32 s47, s47, 7
    s_and_b32 s36, s40, 3
    s_lshl_b32 s36, s36, 14
    s_add_u32 s47, s47, s36
    s_lshl_b32 s36, s35, 8
    s_add_u32 s47, s47, s36
    s_lshl_b32 s36, s33, 20
    s_add_u32 s47, s47, s36''')
    g.prologue(e, ROT2(8))
    e('''s_lshl_b32 s36, s33, 21
    s_lshl_b32 s37, s34, 17
    s_add_u32 s36, s36, s37
    s_lshl_b32 s37, s41, 15
    s_add_u32 s36, s36, s37
    s_lshl_b32 s37, s35, 13
    s_add_u32 s36, s36, s37
    s_lshl_b32 s37, s42, 12
    s_add_u32 s36, s36, s37''')
    g.loop(e, 'WA')
    for tr in range(1):
        d = g.F + tr * 16
        pack(e, d, g.acc(tr, 0), 32)
        for q in range(4):
            e(f'buffer_store_dwordx4 {v(d+4*q,4)}, v1, s[20:23], s36 offen offset:{q*1024}')
        e('s_add_u32 s36, s36, 32768')
    if TICK: e('s_waitcnt vmcnt(0)')
    tick(e, 3)
    tick_store(e, 4, 3)
    e.lab('op_end')
    e('s_endpgm')
    return kernel_desc('op_kernel', g.NV), g.lds

def gu_kernel(e):
    g = G(8, 2, 2, 8, 2, 2, 5, 16, 3584, [(0, 0), (0, 4096)])
    kernel_begin(e, 'gu_kernel')
    tick(e, 0)
    e(f'''s_load_dwordx4 s[8:11], s[0:1], {KA['wg']}
    s_load_dwordx2 s[6:7], s[0:1], {KA['ws']}
    s_cmp_ge_u32 s2, 224
    s_cbranch_scc1 gu_end''')
    code_pf(e, 'gu', 'gu_end', g.ACC + 2)
    e(f'''    s_and_b32 s34, s2, 7
    s_lshr_b32 s35, s2, 3''')
    g.setup(e, None)
    e('''s_lshl_b32 s43, s42, 6
    v_xor_b32 v4, s43, v4
    v_xor_b32 v5, s43, v5
    s_waitcnt lgkmcnt(0)
    s_cmp_ge_u32 s40, 4
    s_cselect_b32 s8, s10, s8
    s_cselect_b32 s9, s11, s9''')
    srd(e, 12, 6, WS_H2, 2 * MB)
    srd(e, 16, 8, 0, 512 * 3584)
    srd(e, 20, 6, WS_HH, 7 * MB)
    e(f'''s_lshl_b32 s46, s34, 3
    s_add_u32 s46, s46, s40
    s_lshl_b32 s46, s46, 15
    s_and_b32 s47, s40, 3
    s_mul_i32 s47, s47, {8*3584}
    s_lshl_b32 s36, s35, 7
    s_add_u32 s47, s47, s36''')
    g.prologue(e, ROT16)
    e(f'''s_lshl_b32 s36, s34, 3
    s_lshl_b32 s37, s41, 1
    s_add_u32 s36, s36, s37
    s_mul_i32 s36, s36, {112*1024}
    s_lshl_b32 s37, s35, 12
    s_add_u32 s36, s36, s37
    s_lshl_b32 s37, s42, 11
    s_add_u32 s36, s36, s37''')
    g.loop(e, 'WA')
    for tr in range(2):
        a, b = g.acc(tr, 0), g.acc(tr, 1)
        for i in range(16):
            e(f'v_mul_f32 v{a+i}, v{a+i}, v{b+i}')
        d = g.F + tr * 8
        pack(e, d, a)
        e(f'buffer_store_dwordx4 {v(d,4)}, v1, s[20:23], s36 offen\nbuffer_store_dwordx4 {v(d+4,4)}, v1, s[20:23], s36 offen offset:1024\ns_add_u32 s36, s36, {112*1024}')
    if TICK: e('s_waitcnt vmcnt(0)')
    tick(e, 3)
    tick_store(e, 4, 5)
    e.lab('gu_end')
    e('s_endpgm')
    return kernel_desc('gu_kernel', g.NV), g.lds

def dn_kernel(e):
    g = G(4, 2, 1, 2, 4, 1, 7, 28, 1024, [(0, 0)], U=4)
    kernel_begin(e, 'dn_kernel')
    tick(e, 0)
    e(f'''s_load_dwordx2 s[8:9], s[0:1], {KA['wd']}
    s_load_dwordx2 s[6:7], s[0:1], {KA['ws']}
    s_load_dwordx2 s[4:5], s[0:1], {KA['out']}
    s_cmp_ge_u32 s2, 256
    s_cbranch_scc1 dn_end''')
    code_pf(e, 'dn', 'dn_end', g.ACC + 2)
    e(f'''    s_and_b32 s34, s2, 7
    s_lshl_b32 s34, s34, 2
    s_bfe_u32 s35, s2, 0x20003
    s_add_u32 s34, s34, s35
    s_lshr_b32 s35, s2, 5''')
    g.setup(e, None)
    e('''s_lshl_b32 s43, s42, 6
    v_xor_b32 v4, s43, v4
    v_xor_b32 v5, s43, v5
    s_waitcnt lgkmcnt(0)''')
    srd(e, 12, 6, WS_HH, 7 * MB)
    srd(e, 16, 8, 0, 1792 * 1024)
    srd(e, 20, 4, 0, 2 * MB)
    srd(e, 24, 6, WS_X1, 2 * MB)
    srd(e, 28, 6, WS_MOD, 3072 * 4)
    X = g.NV
    e(f'''s_lshl_b32 s36, s34, 1
    s_add_u32 s36, s36, s41
    s_lshl_b32 s37, s35, 1
    s_add_u32 s37, s37, s42
    s_lshl_b32 s38, s36, 15
    s_lshl_b32 s39, s37, 11
    s_add_u32 s39, s38, s39
    buffer_load_dwordx4 v[{X}:{X+3}], v1, s[24:27], s39 offen
    buffer_load_dwordx4 v[{X+4}:{X+7}], v1, s[24:27], s39 offen offset:1024
    v_lshrrev_b32 v10, 9, v1
    v_lshlrev_b32 v10, 4, v10
    s_lshl_b32 s39, s37, 7
    s_add_u32 s39, s39, {5*2048}''')
    for q in range(4):
        e(f'buffer_load_dwordx4 {v(X+8+4*q,4)}, v10, s[28:31], s39 offen offset:{32*q}')
    e(f'''v_and_b32 v11, 0x1f0, v1
    v_lshl_add_u32 v10, v11, 6, v10
    s_lshl_b32 s37, s37, 6
    s_add_u32 s38, s38, s37
    s_mul_i32 s46, s36, {112*1024}
    s_lshl_b32 s37, s42, 11
    s_add_u32 s46, s46, s37
    s_lshl_b32 s47, s40, 14
    s_lshl_b32 s37, s35, 7
    s_add_u32 s47, s47, s37''')
    g.prologue(e, ROT2(14))
    g.loop(e, 'WA')
    a = g.acc(0, 0)
    F = g.F
    for i in range(8):
        unpack(e, F + 2 * i, F + 2 * i + 1, X + i)
    for i in range(16):
        e(f'v_fmac_f32 v{F+i}, v{a+i}, v{X+8+i}')
    pack(e, X, F)
    e('s_nop 1')
    for t in range(2):
        e(f'v_permlane32_swap_b32 v{X+4*t}, v{X+4*t+2}\nv_permlane32_swap_b32 v{X+4*t+1}, v{X+4*t+3}')
    e(f's_nop 1\nbuffer_store_dwordx4 {v(X,4)}, v10, s[20:23], s38 offen\nbuffer_store_dwordx4 {v(X+4,4)}, v10, s[20:23], s38 offen offset:32')
    if TICK: e('s_waitcnt vmcnt(0)')
    tick(e, 3)
    tick_store(e, 4, 6)
    e.lab('dn_end')
    e('s_endpgm')
    e.lab('code_end')
    return kernel_desc('dn_kernel', X + 24), g.lds
```

```python
from common import *

def prep_kernel(e):
    kernel_begin(e, 'prep_kernel')
    e(f'''s_load_dwordx2 s[4:5], s[0:1], {KA['ckv']}
    s_load_dwordx4 s[8:11], s[0:1], {KA['c']}
    s_load_dwordx2 s[6:7], s[0:1], {KA['ws']}
    s_load_dwordx4 s[28:31], s[0:1], {KA['wuk']}
    s_cmp_ge_u32 s2, 352
    s_cbranch_scc1 prep_end
    s_waitcnt lgkmcnt(0)
    s_cmp_ge_u32 s2, 96
    s_cbranch_scc1 prep_relayout''')
    srd(e, 12, 8, 0, 1024)
    srd(e, 16, 10, 0, 512 * 3072 * 2)
    srd(e, 20, 6, WS_MOD, 3072 * 4)
    e('''v_lshrrev_b32 v1, 2, v0
    v_lshlrev_b32 v2, 4, v1
    buffer_load_dwordx4 v[4:7], v2, s[12:15], 0 offen
    v_mul_u32_u24 v2, 49152, v1
    v_and_b32 v3, 3, v0
    v_lshl_add_u32 v2, v3, 4, v2
    s_lshl_b32 s24, s2, 6''')
    for i in range(8):
        e(f'buffer_load_dwordx4 v[{32+4*i}:{35+4*i}], v2, s[16:19], s24 offen\ns_add_u32 s24, s24, 6144')
    e('s_waitcnt vmcnt(8)')
    for i in range(4):
        unpack(e, 12 + 2 * i, 13 + 2 * i, 4 + i)
    for i in range(8):
        x = 12 + i
        e(f'''v_mul_f32 v28, 0xbfb8aa3b, v{x}
        v_exp_f32 v28, v28
        s_nop 0
        v_add_f32 v28, 1.0, v28
        v_rcp_f32 v28, v28
        s_nop 0
        v_mul_f32 v{x}, v{x}, v28
        v_cvt_pk_bf16_f32 v{x}, v{x}, v{x}
        v_lshlrev_b32 v{x}, 16, v{x}''')
    for j in range(8):
        e(f'v_mov_b32 v{4+j}, 0')
    for i in range(8):
        e(f's_waitcnt vmcnt({7-i})')
        for j in range(4):
            unpack(e, 28, 29, 32 + 4 * i + j)
            e(f'v_fmac_f32 v{4+2*j}, v28, v{12+i}\nv_fmac_f32 v{5+2*j}, v29, v{12+i}')
    e('''v_lshlrev_b32 v2, 5, v0
    ds_write_b128 v2, v[4:7]
    ds_write_b128 v2, v[8:11] offset:16
    v_readfirstlane_b32 s26, v0
    s_waitcnt lgkmcnt(0)
    s_barrier
    s_cmp_lg_u32 s26, 0
    s_cbranch_scc1 prep_end
    v_and_b32 v2, 31, v0
    v_lshlrev_b32 v2, 2, v2
    v_lshrrev_b32 v3, 5, v0
    v_lshl_add_u32 v3, v3, 12, v2''')
    for i in range(16):
        e(f'ds_read2_b32 v[{32+2*i}:{33+2*i}], v3 offset0:{(64*i) % 256} offset1:{(64*i+32) % 256}')
        if i % 4 == 3:
            e('v_add_u32 v3, 1024, v3')
        if i % 8 == 7:
            e('s_waitcnt lgkmcnt(0)')
    for i in range(2, 32, 2):
        e(f'v_add_f32 v32, v32, v{32+i}\nv_add_f32 v33, v33, v{33+i}')
    e('''v_add_f32 v32, v32, v33
    v_mov_b32 v33, v32
    s_nop 1
    v_permlane32_swap_b32 v33, v32
    s_nop 1
    v_add_f32 v32, v32, v33
    v_cvt_pk_bf16_f32 v32, v32, v32
    v_lshlrev_b32 v32, 16, v32
    s_lshr_b32 s24, s2, 4
    s_cmp_eq_u32 s24, 1
    s_cselect_b32 s25, 1.0, 0
    s_cmp_eq_u32 s24, 4
    s_cselect_b32 s25, 1.0, s25
    v_add_f32 v32, s25, v32
    v_cvt_pk_bf16_f32 v32, v32, v32
    v_lshlrev_b32 v32, 16, v32
    s_lshl_b32 s24, s2, 7
    buffer_store_dword v32, v2, s[20:23], s24 offen
    s_endpgm''')
    e.lab('prep_relayout')
    e(f's_load_dwordx2 s[40:41], s[0:1], {KA["x"]}\ns_load_dwordx2 s[42:43], s[0:1], {KA["out"]}')
    srd(e, 12, 4, 0, 2 * MB)
    srd(e, 16, 6, WS_CKV, 2 * MB)
    e('''s_sub_u32 s2, s2, 96
    v_and_b32 v1, 7, v0
    v_bfe_u32 v2, v0, 3, 1
    v_lshrrev_b32 v3, 4, v0
    v_lshlrev_b32 v4, 10, v1
    v_lshl_add_u32 v4, v2, 3, v4
    v_lshl_add_u32 v4, v3, 5, v4
    s_lshl_b32 s24, s2, 13
    buffer_load_dwordx2 v[8:9], v4, s[12:15], s24 offen
    buffer_load_dwordx2 v[10:11], v4, s[12:15], s24 offen offset:16
    buffer_load_dwordx2 v[12:13], v4, s[12:15], s24 offen offset:512
    buffer_load_dwordx2 v[14:15], v4, s[12:15], s24 offen offset:528
    v_lshlrev_b32 v5, 4, v1
    v_lshl_add_u32 v5, v2, 9, v5
    v_lshl_add_u32 v5, v3, 10, v5
    v_add_u32 v6, 0x4000, v5
    s_lshr_b32 s25, s2, 2
    s_lshl_b32 s25, s25, 15
    s_and_b32 s26, s2, 3
    s_lshl_b32 s26, s26, 7
    s_add_u32 s25, s25, s26
''')
    srd(e, 32, 28, 0, 4 * MB)
    srd(e, 36, 30, 0, 4 * MB)
    NPF = int(os.environ.get('NPF', '4'))
    e(f'v_lshlrev_b32 v1, 4, v0\ns_mul_i32 s24, s2, {NPF * 4096}')
    for i in range(NPF):
        e(f'buffer_load_dwordx4 v[16:19], v1, s[32:35], s24 offen\nbuffer_load_dwordx4 v[20:23], v1, s[36:39], s24 offen\ns_add_u32 s24, s24, 4096')
    n = 2 * NPF
    CPF = int(os.environ.get('CPF', '0')); TPF = int(os.environ.get('TPF', '0')); XPF = int(os.environ.get('XPF', '0'))
    e('s_lshr_b32 s27, s2, 3')
    if CPF:
        e('''s_lshl_b32 s24, s27, 12
        s_min_u32 s24, s24, code_end-kv_kernel-4096
        s_getpc_b64 s[44:45]''')
        e.lab('cpf_pc')
        e('''s_add_u32 s44, s44, s24
        s_addc_u32 s45, s45, 0
        s_add_u32 s44, s44, kv_kernel-cpf_pc
        s_addc_u32 s45, s45, 0
        global_load_dwordx4 v[24:27], v1, s[44:45]''')
        n += 1
    e('s_waitcnt lgkmcnt(0)')
    if XPF:
        srd(e, 32, 40, 0, 2 * MB)
        e('''s_lshl_b32 s24, s2, 13
        buffer_load_dwordx4 v[16:19], v1, s[32:35], s24 offen
        s_add_u32 s24, s24, 4096
        buffer_load_dwordx4 v[20:23], v1, s[32:35], s24 offen''')
        n += 2
    if TPF:
        srd(e, 36, 42, 0, 2 * MB)
        srd(e, 44, 6, 0, 256 * MB)
        e('''s_lshl_b32 s24, s27, 16
        buffer_load_dword v28, off, s[36:39], s24
        s_lshl_b32 s24, s27, 21
        buffer_load_dword v29, off, s[44:47], s24
        s_add_u32 s24, s24, 0x4000000
        buffer_load_dword v30, off, s[44:47], s24''')
        n += 3
    e(f'''s_waitcnt vmcnt({n})
    buffer_store_dwordx4 v[8:11], v5, s[16:19], s25 offen
    buffer_store_dwordx4 v[12:15], v6, s[16:19], s25 offen
    s_waitcnt vmcnt(0)''')
    e.lab('prep_end')
    e('s_endpgm')
    return kernel_desc('prep_kernel', 96, 48)

def ln2_kernel(e, nsplit):
    kernel_begin(e, 'ln2_kernel')
    e(f'''s_load_dwordx2 s[4:5], s[0:1], {KA['x']}
    s_load_dwordx2 s[6:7], s[0:1], {KA['ws']}
    s_cmp_ge_u32 s2, 256
    s_cbranch_scc1 ln2_end''')
    code_pf(e, 'ln2', 'ln2_end', 128, 38)
    e(f'''    s_waitcnt lgkmcnt(0)''')
    srd(e, 12, 4, 0, 2 * MB)
    srd(e, 16, 6, WS_PART, nsplit * 2 * MB)
    srd(e, 20, 6, WS_MOD, 3072 * 4)
    srd(e, 24, 6, WS_X1, 2 * MB)
    srd(e, 28, 6, WS_H2, 2 * MB)
    e('''v_and_b32 v1, 7, v0
    v_bfe_u32 v2, v0, 3, 1
    v_lshrrev_b32 v3, 4, v0
    v_lshlrev_b32 v5, 4, v1
    v_lshl_add_u32 v5, v2, 9, v5
    v_lshl_add_u32 v5, v3, 10, v5
    v_add_u32 v6, 0x4000, v5
    s_lshr_b32 s33, s2, 2
    s_and_b32 s34, s2, 3
    s_lshl_b32 s34, s34, 7
    s_lshl_b32 s33, s33, 15
    s_add_u32 s33, s33, s34
    s_mov_b32 s35, s33''')
    P = 64
    R = 96
    for sp in range(nsplit):
        r = R + sp * 8
        e(f'buffer_load_dwordx4 v[{r}:{r+3}], v5, s[16:19], s35 offen\nbuffer_load_dwordx4 v[{r+4}:{r+7}], v6, s[16:19], s35 offen\ns_add_u32 s35, s35, {2*MB}')
    e('''v_lshlrev_b32 v4, 10, v1
    v_lshl_add_u32 v4, v2, 3, v4
    v_lshl_add_u32 v4, v3, 5, v4
    s_lshl_b32 s36, s2, 13
    buffer_load_dwordx2 v[8:9], v4, s[12:15], s36 offen
    buffer_load_dwordx2 v[10:11], v4, s[12:15], s36 offen offset:16
    buffer_load_dwordx2 v[12:13], v4, s[12:15], s36 offen offset:512
    buffer_load_dwordx2 v[14:15], v4, s[12:15], s36 offen offset:528
    v_lshlrev_b32 v4, 4, v2
    v_lshl_add_u32 v4, v3, 6, v4''')
    for base, idx in ((16, 2), (32, 4), (48, 3)):
        e(f's_mov_b32 s36, {idx*2048}')
        for q, off in enumerate((0, 32, 1024, 1056)):
            e(f'buffer_load_dwordx4 v[{base+4*q}:{base+4*q+3}], v4, s[20:23], s36 offen offset:{off}')
    e('s_waitcnt vmcnt(16)')
    for i in range(8):
        unpack(e, P + 2 * i, P + 2 * i + 1, R + i)
        for sp in range(1, nsplit):
            unpack(e, 80, 81, R + 8 * sp + i)
            e(f'v_add_f32 v{P+2*i}, v{P+2*i}, v80\nv_add_f32 v{P+2*i+1}, v{P+2*i+1}, v81')
    e('s_waitcnt vmcnt(0)')
    X = P + 16
    for i in range(8):
        unpack(e, X + 2 * i, X + 2 * i + 1, 8 + i)
    for i in range(16):
        e(f'v_fmac_f32 v{X+i}, v{P+i}, v{16+i}')
    for i in range(8):
        e(f'v_cvt_pk_bf16_f32 v{8+i}, v{X+2*i}, v{X+2*i+1}')
    e('buffer_store_dwordx4 v[8:11], v5, s[24:27], s33 offen\nbuffer_store_dwordx4 v[12:15], v6, s[24:27], s33 offen')
    for i in range(8):
        unpack(e, X + 2 * i, X + 2 * i + 1, 8 + i)
    layernorm_rows(e, [X + i for i in range(16)], 4, 0, P, 0, [32 + i for i in range(16)], [48 + i for i in range(16)])
    for i in range(8):
        e(f'v_cvt_pk_bf16_f32 v{24+i}, v{X+2*i}, v{X+2*i+1}')
    e('buffer_store_dwordx4 v[24:27], v5, s[28:31], s33 offen\nbuffer_store_dwordx4 v[28:31], v6, s[28:31], s33 offen')
    e.lab('ln2_end')
    e('s_endpgm')
    return kernel_desc('ln2_kernel', 132, 40)
```

```python
from common import *

def prep_kernel(e):
    kernel_begin(e, 'prep_kernel')
    e(f'''s_load_dwordx2 s[4:5], s[0:1], {KA['ckv']}
    s_load_dwordx4 s[8:11], s[0:1], {KA['c']}
    s_load_dwordx2 s[6:7], s[0:1], {KA['ws']}
    s_load_dwordx4 s[28:31], s[0:1], {KA['wuk']}
    s_cmp_ge_u32 s2, 352
    s_cbranch_scc1 prep_end
    s_waitcnt lgkmcnt(0)
    s_cmp_ge_u32 s2, 96
    s_cbranch_scc1 prep_relayout''')
    srd(e, 12, 8, 0, 1024)
    srd(e, 16, 10, 0, 512 * 3072 * 2)
    srd(e, 20, 6, WS_MOD, 3072 * 4)
    e('''v_lshrrev_b32 v1, 2, v0
    v_lshlrev_b32 v2, 4, v1
    buffer_load_dwordx4 v[4:7], v2, s[12:15], 0 offen
    v_mul_u32_u24 v2, 49152, v1
    v_and_b32 v3, 3, v0
    v_lshl_add_u32 v2, v3, 4, v2
    s_lshl_b32 s24, s2, 6''')
    for i in range(8):
        e(f'buffer_load_dwordx4 v[{32+4*i}:{35+4*i}], v2, s[16:19], s24 offen\ns_add_u32 s24, s24, 6144')
    e('s_waitcnt vmcnt(8)')
    for i in range(4):
        unpack(e, 12 + 2 * i, 13 + 2 * i, 4 + i)
    for i in range(8):
        x = 12 + i
        e(f'''v_mul_f32 v28, 0xbfb8aa3b, v{x}
        v_exp_f32 v28, v28
        s_nop 0
        v_add_f32 v28, 1.0, v28
        v_rcp_f32 v28, v28
        s_nop 0
        v_mul_f32 v{x}, v{x}, v28
        v_cvt_pk_bf16_f32 v{x}, v{x}, v{x}
        v_lshlrev_b32 v{x}, 16, v{x}''')
    for j in range(8):
        e(f'v_mov_b32 v{4+j}, 0')
    for i in range(8):
        e(f's_waitcnt vmcnt({7-i})')
        for j in range(4):
            unpack(e, 28, 29, 32 + 4 * i + j)
            e(f'v_fmac_f32 v{4+2*j}, v28, v{12+i}\nv_fmac_f32 v{5+2*j}, v29, v{12+i}')
    e('''v_lshlrev_b32 v2, 5, v0
    ds_write_b128 v2, v[4:7]
    ds_write_b128 v2, v[8:11] offset:16
    v_readfirstlane_b32 s26, v0
    s_waitcnt lgkmcnt(0)
    s_barrier
    s_cmp_lg_u32 s26, 0
    s_cbranch_scc1 prep_end
    v_and_b32 v2, 31, v0
    v_lshlrev_b32 v2, 2, v2
    v_lshrrev_b32 v3, 5, v0
    v_lshl_add_u32 v3, v3, 12, v2''')
    for i in range(16):
        e(f'ds_read2_b32 v[{32+2*i}:{33+2*i}], v3 offset0:{(64*i) % 256} offset1:{(64*i+32) % 256}')
        if i % 4 == 3:
            e('v_add_u32 v3, 1024, v3')
        if i % 8 == 7:
            e('s_waitcnt lgkmcnt(0)')
    for i in range(2, 32, 2):
        e(f'v_add_f32 v32, v32, v{32+i}\nv_add_f32 v33, v33, v{33+i}')
    e('''v_add_f32 v32, v32, v33
    v_mov_b32 v33, v32
    s_nop 1
    v_permlane32_swap_b32 v33, v32
    s_nop 1
    v_add_f32 v32, v32, v33
    v_cvt_pk_bf16_f32 v32, v32, v32
    v_lshlrev_b32 v32, 16, v32
    s_lshr_b32 s24, s2, 4
    s_cmp_eq_u32 s24, 1
    s_cselect_b32 s25, 1.0, 0
    s_cmp_eq_u32 s24, 4
    s_cselect_b32 s25, 1.0, s25
    v_add_f32 v32, s25, v32
    v_cvt_pk_bf16_f32 v32, v32, v32
    v_lshlrev_b32 v32, 16, v32
    s_lshl_b32 s24, s2, 7
    buffer_store_dword v32, v2, s[20:23], s24 offen
    s_endpgm''')
    e.lab('prep_relayout')
    CPF = int(os.environ.get('CPF', '0')); TPF = int(os.environ.get('TPF', '0')); XPF = int(os.environ.get('XPF', '0'))
    if TPF or XPF:
        e(f's_load_dwordx2 s[40:41], s[0:1], {KA["x"]}\ns_load_dwordx2 s[42:43], s[0:1], {KA["out"]}')
    srd(e, 12, 4, 0, 2 * MB)
    srd(e, 16, 6, WS_CKV, 2 * MB)
    e('''s_sub_u32 s2, s2, 96
    v_and_b32 v1, 7, v0
    v_bfe_u32 v2, v0, 3, 1
    v_lshrrev_b32 v3, 4, v0
    v_lshlrev_b32 v4, 10, v1
    v_lshl_add_u32 v4, v2, 3, v4
    v_lshl_add_u32 v4, v3, 5, v4
    s_lshl_b32 s24, s2, 13
    buffer_load_dwordx2 v[8:9], v4, s[12:15], s24 offen
    buffer_load_dwordx2 v[10:11], v4, s[12:15], s24 offen offset:16
    buffer_load_dwordx2 v[12:13], v4, s[12:15], s24 offen offset:512
    buffer_load_dwordx2 v[14:15], v4, s[12:15], s24 offen offset:528
    v_lshlrev_b32 v5, 4, v1
    v_lshl_add_u32 v5, v2, 9, v5
    v_lshl_add_u32 v5, v3, 10, v5
    v_add_u32 v6, 0x4000, v5
    s_lshr_b32 s25, s2, 2
    s_lshl_b32 s25, s25, 15
    s_and_b32 s26, s2, 3
    s_lshl_b32 s26, s26, 7
    s_add_u32 s25, s25, s26
''')
    srd(e, 32, 28, 0, 4 * MB)
    srd(e, 36, 30, 0, 4 * MB)
    NPF = int(os.environ.get('NPF', '2'))
    e(f'v_lshlrev_b32 v1, 4, v0\ns_mul_i32 s24, s2, {NPF * 4096}')
    for i in range(NPF):
        e(f'buffer_load_dwordx4 v[16:19], v1, s[32:35], s24 offen\nbuffer_load_dwordx4 v[20:23], v1, s[36:39], s24 offen\ns_add_u32 s24, s24, 4096')
    n = 2 * NPF
    CPF = int(os.environ.get('CPF', '0')); TPF = int(os.environ.get('TPF', '0')); XPF = int(os.environ.get('XPF', '0'))
    if CPF or TPF: e('s_lshr_b32 s27, s2, 3')
    if CPF:
        e('''s_lshl_b32 s24, s27, 12
        s_min_u32 s24, s24, code_end-kv_kernel-4096
        s_getpc_b64 s[44:45]''')
        e.lab('cpf_pc')
        e('''s_add_u32 s44, s44, s24
        s_addc_u32 s45, s45, 0
        s_add_u32 s44, s44, kv_kernel-cpf_pc
        s_addc_u32 s45, s45, 0
        global_load_dwordx4 v[24:27], v1, s[44:45]''')
        n += 1
    if TPF or XPF: e('s_waitcnt lgkmcnt(0)')
    if XPF:
        srd(e, 32, 40, 0, 2 * MB)
        e('''s_lshl_b32 s24, s2, 13
        buffer_load_dwordx4 v[16:19], v1, s[32:35], s24 offen
        s_add_u32 s24, s24, 4096
        buffer_load_dwordx4 v[20:23], v1, s[32:35], s24 offen''')
        n += 2
    if TPF:
        srd(e, 36, 42, 0, 2 * MB)
        srd(e, 44, 6, 0, 256 * MB)
        e('''s_lshl_b32 s24, s27, 16
        buffer_load_dword v28, off, s[36:39], s24
        s_lshl_b32 s24, s27, 21
        buffer_load_dword v29, off, s[44:47], s24
        s_add_u32 s24, s24, 0x4000000
        buffer_load_dword v30, off, s[44:47], s24''')
        n += 3
    e(f'''s_waitcnt vmcnt({n})
    buffer_store_dwordx4 v[8:11], v5, s[16:19], s25 offen
    buffer_store_dwordx4 v[12:15], v6, s[16:19], s25 offen
    s_waitcnt vmcnt(0)''')
    e.lab('prep_end')
    e('s_endpgm')
    return kernel_desc('prep_kernel', 96, 48)

def ln2_kernel(e, nsplit):
    kernel_begin(e, 'ln2_kernel')
    e(f'''s_load_dwordx2 s[4:5], s[0:1], {KA['x']}
    s_load_dwordx2 s[6:7], s[0:1], {KA['ws']}
    s_cmp_ge_u32 s2, 256
    s_cbranch_scc1 ln2_end''')
    code_pf(e, 'ln2', 'ln2_end', 128, 38)
    e(f'''    s_waitcnt lgkmcnt(0)''')
    srd(e, 12, 4, 0, 2 * MB)
    srd(e, 16, 6, WS_PART, nsplit * 2 * MB)
    srd(e, 20, 6, WS_MOD, 3072 * 4)
    srd(e, 24, 6, WS_X1, 2 * MB)
    srd(e, 28, 6, WS_H2, 2 * MB)
    e('''v_and_b32 v1, 7, v0
    v_bfe_u32 v2, v0, 3, 1
    v_lshrrev_b32 v3, 4, v0
    v_lshlrev_b32 v5, 4, v1
    v_lshl_add_u32 v5, v2, 9, v5
    v_lshl_add_u32 v5, v3, 10, v5
    v_add_u32 v6, 0x4000, v5
    s_lshr_b32 s33, s2, 2
    s_and_b32 s34, s2, 3
    s_lshl_b32 s34, s34, 7
    s_lshl_b32 s33, s33, 15
    s_add_u32 s33, s33, s34
    s_mov_b32 s35, s33''')
    P = 64
    R = 96
    for sp in range(nsplit):
        r = R + sp * 8
        e(f'buffer_load_dwordx4 v[{r}:{r+3}], v5, s[16:19], s35 offen\nbuffer_load_dwordx4 v[{r+4}:{r+7}], v6, s[16:19], s35 offen\ns_add_u32 s35, s35, {2*MB}')
    e('''v_lshlrev_b32 v4, 10, v1
    v_lshl_add_u32 v4, v2, 3, v4
    v_lshl_add_u32 v4, v3, 5, v4
    s_lshl_b32 s36, s2, 13
    buffer_load_dwordx2 v[8:9], v4, s[12:15], s36 offen
    buffer_load_dwordx2 v[10:11], v4, s[12:15], s36 offen offset:16
    buffer_load_dwordx2 v[12:13], v4, s[12:15], s36 offen offset:512
    buffer_load_dwordx2 v[14:15], v4, s[12:15], s36 offen offset:528
    v_lshlrev_b32 v4, 4, v2
    v_lshl_add_u32 v4, v3, 6, v4''')
    for base, idx in ((16, 2), (32, 4), (48, 3)):
        e(f's_mov_b32 s36, {idx*2048}')
        for q, off in enumerate((0, 32, 1024, 1056)):
            e(f'buffer_load_dwordx4 v[{base+4*q}:{base+4*q+3}], v4, s[20:23], s36 offen offset:{off}')
    e('s_waitcnt vmcnt(16)')
    for i in range(8):
        unpack(e, P + 2 * i, P + 2 * i + 1, R + i)
        for sp in range(1, nsplit):
            unpack(e, 80, 81, R + 8 * sp + i)
            e(f'v_add_f32 v{P+2*i}, v{P+2*i}, v80\nv_add_f32 v{P+2*i+1}, v{P+2*i+1}, v81')
    e('s_waitcnt vmcnt(0)')
    X = P + 16
    for i in range(8):
        unpack(e, X + 2 * i, X + 2 * i + 1, 8 + i)
    for i in range(16):
        e(f'v_fmac_f32 v{X+i}, v{P+i}, v{16+i}')
    for i in range(8):
        e(f'v_cvt_pk_bf16_f32 v{8+i}, v{X+2*i}, v{X+2*i+1}')
    e('buffer_store_dwordx4 v[8:11], v5, s[24:27], s33 offen\nbuffer_store_dwordx4 v[12:15], v6, s[24:27], s33 offen')
    for i in range(8):
        unpack(e, X + 2 * i, X + 2 * i + 1, 8 + i)
    layernorm_rows(e, [X + i for i in range(16)], 4, 0, P, 0, [32 + i for i in range(16)], [48 + i for i in range(16)])
    for i in range(8):
        e(f'v_cvt_pk_bf16_f32 v{24+i}, v{X+2*i}, v{X+2*i+1}')
    e('buffer_store_dwordx4 v[24:27], v5, s[28:31], s33 offen\nbuffer_store_dwordx4 v[28:31], v6, s[28:31], s33 offen')
    e.lab('ln2_end')
    e('s_endpgm')
    return kernel_desc('ln2_kernel', 132 if OPF else 128, 40)
```
